```python
import torch

def _softmax(x, axis=-1):
    return torch.softmax(x, dim=axis)
def _gelu(x):
    return torch.nn.functional.gelu(x, approximate="tanh")
def _silu(x):
    return torch.nn.functional.silu(x)
def _sigmoid(x):
    return torch.sigmoid(x)
def _layernorm(x, axis=-1, eps=1e-5):
    m = x.mean(dim=axis, keepdim=True)
    v = x.var(dim=axis, keepdim=True, unbiased=False)
    return (x - m) / torch.sqrt(v + eps)
def _scatter_add(tgt, idx, src, axis=0):
    return tgt.clone().index_add_(axis, idx, src)
def _segment_sum(src, seg, n):
    out = torch.zeros((n,) + src.shape[1:], dtype=src.dtype)
    return out.index_add_(0, seg, src)
def _pad(x, pw):
    flat = tuple(v for pair in reversed(pw) for v in pair)
    return torch.nn.functional.pad(x, flat)

kernel_name = 'standalone__edge_featured_mpnn_mpnn__graph'

def setup_inputs():

    _w = (lambda a: (lambda t: t.to(torch.bfloat16) if t.is_floating_point() else t)(torch.as_tensor(a)))
    N, deg, D, De = 12500, 32, 128, max(4, 1)
    E = N * deg
    H = 2 * D
    return {
        "x": _w((lambda *s: torch.randn(*s, dtype=torch.bfloat16) * 0.05)(N, D)),
        "e_attr": _w((lambda *s: torch.randn(*s, dtype=torch.bfloat16) * 1.6)(E, De)),
        "src": _w((lambda lo, hi, *s: torch.randint(lo, hi, s))(0, N, E).to(torch.int64)),
        "dst": _w((lambda lo, hi, *s: torch.randint(lo, hi, s))(0, N, E).to(torch.int64)),
        "w1": _w((lambda *s: torch.randn(*s, dtype=torch.bfloat16) * 1.6)(2 * D + De, H) * (1.0 / (2 * D + De) ** 0.5)),
        "b1": _w((lambda *s: torch.randn(*s, dtype=torch.bfloat16) * 3.2)(H) * 0.01),
        "w2": _w((lambda *s: torch.randn(*s, dtype=torch.bfloat16) * 0.05)(H, D) * (1.0 / H ** 0.5)),
        "b2": _w((lambda *s: torch.randn(*s, dtype=torch.bfloat16) * 0.1)(D) * 0.01),
    }

def reference(x, e_attr, src, dst, w1, b1, w2, b2):
    N, D = x.shape
    h_src = x[src]
    h_dst = x[dst]
    m_in = torch.concatenate([h_src, h_dst, e_attr], axis=-1)
    h = _silu(m_in @ w1 + b1)
    msg = h @ w2 + b2
    return _segment_sum(msg, dst, N)
```

```python
import re
TRANS=('v_exp_','v_log_','v_rcp_','v_rsq_','v_sqrt_','v_sin_','v_cos_')
def regs_of(op):
    op=op.strip()
    op=op.strip('|').lstrip('-').strip('|')
    m=re.fullmatch(r'([vsa])(\d+)',op)
    if m: return {(m.group(1),int(m.group(2)))}
    m=re.fullmatch(r'([vsa])\[(\d+):(\d+)\]',op)
    if m: return {(m.group(1),i) for i in range(int(m.group(2)),int(m.group(3))+1)}
    if op in('vcc','vcc_lo','vcc_hi'): return {('vcc',0)}
    if op in('exec','exec_lo','exec_hi'): return {('exec',0)}
    if op=='m0': return {('m0',0)}
    return set()
def parse(line):
    line=line.split(';')[0].strip()
    if not line or line.endswith(':') or line.startswith('.'): return None
    parts=line.split(None,1)
    mn=parts[0]; rest=parts[1] if len(parts)>1 else ''
    ops=[];cur='';d=0
    for ch in rest:
        if ch in '[(': d+=1
        if ch in '])': d-=1
        if ch==',' and d==0: ops.append(cur.strip()); cur=''
        else: cur+=ch
    if cur.strip(): ops.append(cur.strip())
    mods=''
    if ops:
        sp=ops[-1].split(None,1)
        ops[-1]=sp[0]
        if len(sp)>1: mods=sp[1]
    I=dict(mn=mn,ops=ops,mods=mods,text=line)
    R=[regs_of(o) for o in ops]
    w=set();r=set()
    isv=mn.startswith('v_'); iss=mn.startswith('s_'); isds=mn.startswith('ds_'); isvm=mn.startswith(('buffer_','global_'))
    I['mfma']=mn.startswith('v_mfma'); I['valu']=isv and not I['mfma']; I['salu']=iss; I['ds']=isds; I['vmem']=isvm
    I['trans']=mn.startswith(TRANS); I['dpp']=('_dpp' in mn) or ('quad_perm' in mods) or ('row_' in mods)
    I['C']=set()
    if I['mfma']:
        w=R[0]; r=R[1]|R[2]|R[3]; I['AB']=R[1]|R[2]; I['C']=R[3]
        I['passes']=8 if '32x32' in mn else 4
    elif isv:
        if mn.startswith('v_cmp'):
            w=R[0]; r=set().union(*R[1:])
            if mn.startswith('v_cmpx'): w=w|{('exec',0)}
        elif mn.startswith(('v_add_co','v_sub_co','v_addc_co','v_subb_co','v_subrev_co','v_mad_u64')):
            w=R[0]|R[1]; r=set().union(*R[2:])
        elif mn.startswith('v_permlane') or mn.startswith('v_swap'):
            w=R[0]|R[1]; r=R[0]|R[1]
        else:
            w=R[0]; r=set().union(*R[1:]) if len(R)>1 else set()
            if mn.startswith(('v_fmac','v_writelane')) or I['dpp'] or 'sdwa' in mn: r|=R[0]
            if mn.startswith('v_cndmask') and len(ops)==3: r|={('vcc',0)}
    elif iss:
        if mn.startswith(('s_cmp','s_cbranch','s_branch','s_waitcnt','s_barrier','s_nop','s_setprio','s_endpgm','s_sleep','s_bitcmp')):
            r=set().union(*R) if R else set()
            if 'vcc' in mn: r|={('vcc',0)}
        else:
            w=R[0] if R else set(); r=set().union(*R[1:]) if len(R)>1 else set()
            if 'saveexec' in mn: w=w|{('exec',0)}; r|={('exec',0)}
    elif isds:
        if mn.startswith(('ds_read','ds_bpermute','ds_permute','ds_swizzle')) or 'rtn' in mn:
            w=R[0]; r=set().union(*R[1:]) if len(R)>1 else set()
        else: r=set().union(*R)
    elif isvm:
        if ' lds' in (' '+mods) :
            r=set().union(*R)|{('m0',0)}; I['ldsdma']=True
        elif 'load' in mn: w=R[0]; r=set().union(*R[1:])
        else:
            r=set().union(*R); I['stdata']=R[0] if mn.startswith('buffer') else R[1]
            if 'atomic' in mn and 'sc0' in mods: w=R[0]
    I['w']=w; I['r']=r
    I['ws']=1
    if mn=='s_nop': I['ws']=int(ops[0],0)+1
    return I
def need(p,c):
    n=0; why=''
    def up(k,s):
        nonlocal n,why
        if k>n: n=k; why=s
    pv={x for x in p['w'] if x[0] in 'va' and x[0]!='vcc'}
    ps={x for x in p['w'] if x[0] in ('s','vcc')}
    if p['valu']:
        if c['valu'] and c['dpp'] and pv&c['r']: up(2,'valu->dpp')
        if c['mn'].startswith(('v_readlane','v_readfirstlane')) and pv&c['r']: up(1,'valu->readlane')
        if c['mn'].startswith('v_permlane') and pv&c['r']: up(2,'valu->permlane')
        if p['trans'] and c['valu'] and not c['trans'] and pv&c['r']: up(1,'trans->valu')
        if p['trans'] and (c['mfma']) and pv&c['r']: up(2,'trans->mfma')
        if c['mfma'] and pv&c['r']: up(2,'valu->mfma')
        if (c['valu'] or c['mfma']) and ps&c['r']: up(2,'valu sgpr->valu')
        if c['mn'].startswith(('v_readlane','v_writelane')) and ps&c['r']: up(4,'valu sgpr->lanesel')
        if c['vmem'] and ps&c['r']: up(5,'valu sgpr->vmem')
        if ('exec',0) in p['w']:
            if c['dpp']: up(5,'valu exec->dpp')
            if c['mfma']: up(4,'valu exec->mfma')
            if c['mn'].startswith(('v_readlane','v_readfirstlane','v_writelane','v_permlane')): up(4,'cmpx->lane')
        if ('vcc',0) in p['w'] and c['mn'].startswith('s_cbranch_vcc'): up(0,'')
    if p['mfma']:
        k=p['passes']
        a={8:(10,12,7),4:(6,8,3)}[k]
        if c['mfma']:
            if p['w']&c['AB']: up(a[1],'mfma->mfma AB')
            if p['w']&c['C'] and not (p['w']==c['C'] and c['passes']==k): up(a[0],'mfma->mfma C partial')
            if p['w']&c['w'] and not (p['w']&c['C']): up(a[0],'mfma->mfma WAW')
        elif c['valu'] or c['ds'] or c['vmem']:
            if p['w']&(c['r']|c['w']): up(a[1],'mfma D->use')
        if c['valu'] and p['C']&c['w']: up(a[2],'mfma C WAR')
    if p['salu'] and ('m0',0) in p['w'] and (c.get('ldsdma') or 'addtid' in c['mn']): up(1,'m0->dma')
    if p['vmem'] and p.get('stdata') and len(p['stdata'])>=3 and (c['valu'] or c['mfma']) and p['stdata']&c['w']: up(2,'store data WAR')
    return n,why
def check_seq(ins, tag=''):
    bad=[]
    for j,c in enumerate(ins):
        d=0
        for i in range(j-1,max(-1,j-22),-1):
            p=ins[i]
            n,why=need(p,c)
            if n>d: bad.append(f"{tag}HAZARD {why}: need {n} have {d}: [{p['text']}] -> [{c['text']}]")
            d+=p['ws']
            if d>=20: break
    return bad
def check(text):
    lines=text.split('\n')
    ins=[];labels={}
    for l in lines:
        s=l.split(';')[0].strip()
        if s.endswith(':') and not s.startswith('.'):
            labels[s[:-1]]=len(ins); continue
        I=parse(l)
        if I: ins.append(I)
    bad=[]; seg=[]
    for I in ins:
        seg.append(I)
        if I['mn'] in('s_branch','s_endpgm'):
            bad+=check_seq(seg); seg=[]
    bad+=check_seq(seg)
    for k,I in enumerate(ins):
        if I['mn'].startswith(('s_cbranch','s_branch')):
            t=labels.get(I['ops'][0])
            if t is None: bad.append('unknown label '+I['text']); continue
            a=[]
            for q in range(k,max(-1,k-22),-1):
                if q<k and ins[q]['mn'] in('s_branch','s_endpgm'): break
                a.insert(0,ins[q])
            b=[]
            for q in range(t,min(len(ins),t+22)):
                b.append(ins[q])
                if ins[q]['mn'] in('s_branch','s_endpgm'): break
            bad+=check_seq(a+b,'(branch) ')
    return sorted(set(bad))
if __name__=='__main__':
    import sys
    b=check(open(sys.argv[1]).read())
    print("\n".join(b) if b else "no hazards found")
```

```python
class R:
    pass
def regs(start=4):
    r=R()
    n=[start]
    def al(k,a=4):
        n[0]=(n[0]+a-1)//a*a
        b=n[0]; n[0]+=k; return b
    r.S=[al(16),al(16)]
    r.Y=[al(16),al(16)]
    r.E=al(16)
    r.N=[al(2,2),al(2,2)]; r.D=[al(2,2),al(2,2)]; r.RC=al(4)
    r.H=[al(4),al(4)]
    r.AF=[al(4) for _ in range(4)]
    r.AX=al(4); r.BX=[al(4),al(4)]; r.OH=al(4); r.BS=[al(4),al(4)]
    r.DI=al(4)
    r.aA=al(1,1)
    r.aREC=al(1,1); r.stREC=al(1,1); r.aSRC=al(1,1); r.aCH=al(1,1); r.chv=al(1,1); r.aQ=[al(1,1),al(1,1)]; r.cQ=al(1,1)
    r.top=n[0]
    return r
def v(b,k=1): return f"v{b}" if k==1 else f"v[{b}:{b+k-1}]"
MF="v_mfma_f32_32x32x16_bf16"
sONE=40
sRING=44
sPSRD=48
SLOT=4160
DPAD=1040

def interleave(main, extra, start=0, step=1):
    out=[]; j=0
    for i,x in enumerate(main):
        out.append(x)
        if i>=start and (i-start)%step==0 and j<len(extra):
            e=extra[j]; j+=1
            out += e if isinstance(e,list) else [e]
    for e in extra[j:]:
        out += e if isinstance(e,list) else [e]
    return out

def xphase(r, cur, nxt, af0, af1, bx, seg):
    Y=r.Y[cur]; Yn=r.Y[nxt]
    ex=[f"v_exp_f32 {v(r.E+i)}, {v(Y+i)}" for i in range(16)]
    mf=[f"{MF} {v(Yn,16)}, {v(af0,4)}, {v(r.BS[0],4)}, 0",
        f"{MF} {v(Yn,16)}, {v(af1,4)}, {v(r.BS[1],4)}, {v(Yn,16)}",
        f"{MF} {v(Yn,16)}, {v(r.AX,4)}, {v(bx,4)}, {v(Yn,16)}"]
    if seg is not None:
        mf.append(f"{MF} {v(r.S[seg],16)}, {v(r.H[seg],4)}, {v(r.OH,4)}, {v(r.S[seg],16)}")
    out=[]
    for i,m in enumerate(mf):
        out.append(m); out+=ex[3*i:3*i+3]
    out+=ex[3*len(mf):]
    return out
def pphase(r, cur, par, fast):
    Y=r.Y[cur]; E=r.E
    o=[]
    def y(b,p): return v(Y+8*b+2*p,2)
    def e(b,p): return v(E+8*b+2*p,2)
    N=[v(r.N[0],2),v(r.N[1],2)]; D=[v(r.D[0],2),v(r.D[1],2)]
    if fast:
        for b in (0,1): o.append(f"v_pk_add_f32 {D[b]}, {e(b,0)}, s[{sONE}:{sONE+1}]")
        for p in (1,2,3):
            for b in (0,1):
                src = y(b,0) if p==1 else N[b]
                o.append(f"v_pk_fma_f32 {N[b]}, {src}, {e(b,p)}, {src}")
            for b in (0,1): o.append(f"v_pk_fma_f32 {N[b]}, {y(b,p)}, {D[b]}, {N[b]}")
            for b in (0,1): o.append(f"v_pk_fma_f32 {D[b]}, {D[b]}, {e(b,p)}, {D[b]}")
        for b in (0,1):
            o.append(f"v_rcp_f32 {v(r.RC+2*b)}, {v(r.D[b])}")
            o.append(f"v_rcp_f32 {v(r.RC+2*b+1)}, {v(r.D[b]+1)}")
        for b in (0,1): o.append(f"v_pk_mul_f32 {N[b]}, {N[b]}, {v(r.RC+2*b,2)}")
    else:
        for i in range(8): o.append(f"v_pk_add_f32 {v(E+2*i,2)}, {v(E+2*i,2)}, s[{sONE}:{sONE+1}]")
        for i in range(16): o.append(f"v_rcp_f32 {v(E+i)}, {v(E+i)}")
        for b in (0,1): o.append(f"v_pk_mul_f32 {N[b]}, {y(b,0)}, {e(b,0)}")
        for p in (1,2,3):
            for b in (0,1): o.append(f"v_pk_fma_f32 {N[b]}, {y(b,p)}, {e(b,p)}, {N[b]}")
    for b in (0,1): o.append(f"v_cvt_pk_bf16_f32 {v(r.H[cur]+2*par+b)}, {v(r.N[b])}, {v(r.N[b]+1)}")
    return o
def reads(r, par, first=False):
    np_=1-par
    slot=np_*SLOT
    rd=[]
    rd.append([f"s_waitcnt vmcnt(4)", f"ds_read_b128 {v(r.AF[0],4)}, {v(r.aA)} offset:{slot}"])
    rd.append(f"ds_read_b128 {v(r.AF[1],4)}, {v(r.aA)} offset:{slot+32}")
    rd.append([f"v_add_u32 {v(r.aQ[np_])}, {v(r.chv)}, {v(r.cQ)}"])
    rd.append(f"ds_read_b128 {v(r.AX,4)}, {v(r.aREC)} offset:{512*(par+1)}")
    rd.append(f"ds_read_b64_tr_b16 {v(r.BX[0]+2,2)}, {v(r.aQ[np_])} offset:0")
    rd.append(f"ds_read_b128 {v(r.AF[2],4)}, {v(r.aA)} offset:{slot+64}")
    rd.append(f"ds_read_b128 {v(r.AF[3],4)}, {v(r.aA)} offset:{slot+96}")
    rd.append(f"ds_read_b128 {v(r.DI,4)}, {v(r.aSRC)} offset:{128*(par+3)}")
    rd.append(f"ds_read_b64_tr_b16 {v(r.BX[1]+2,2)}, {v(r.aQ[np_])} offset:64")
    rd.append(f"ds_read_b32 {v(r.chv)}, {v(r.aCH)} offset:{32*(par+2)}")
    if par==0:
        rd.append(f"ds_read_b64_tr_b16 {v(r.OH,2)}, {v(r.aQ[0])} offset:128")
        rd.append(f"ds_read_b64_tr_b16 {v(r.OH+2,2)}, {v(r.aQ[1])} offset:128")
    return rd
def dmas(r, slotpar):
    dm=[]
    for j in range(4):
        dm.append(f"buffer_load_dwordx4 {v(r.DI+j)}, s[{sPSRD}:{sPSRD+3}], 0 offen offset:{DPAD*j} lds")
    return dm
def tile(r, par, fast, opt=None):
    o=[]
    opt=opt or {}
    np_=1-par
    if opt.get('sprio',1): o.append(f"s_setprio {3-2*par}")
    o+=xphase(r,0,1,r.AF[2],r.AF[3],r.BX[1], 1 if par==0 else None)
    rd=reads(r,par)
    if opt.get('nolds'): rd=[]
    o+=interleave(pphase(r,0,par,fast), rd, opt.get('rs',0), opt.get('rstep',1))
    if opt.get('sprio',1): o.append(f"s_setprio {2-2*par}")
    o.append(f"s_mov_b32 m0, s{sRING+np_}")
    o.append("s_waitcnt lgkmcnt(0)")
    x=xphase(r,1,0,r.AF[0],r.AF[1],r.BX[0], 0 if par==1 else None)
    dm=dmas(r,np_)
    if opt.get('nodma'): dm=[]
    p=pphase(r,1,par,fast)
    if opt.get('dmax'):
        x=interleave(x,dm,opt['dmax'][0],opt['dmax'][1])
    else:
        p=interleave(p,dm,opt.get('ds',0),opt.get('dstep',1))
    if par==1:
        adv=[f"v_add_u32 {v(r.aREC)}, {v(r.stREC)}, {v(r.aREC)}", f"v_add_u32 {v(r.aSRC)}, 256, {v(r.aSRC)}", f"v_add_u32 {v(r.aCH)}, 64, {v(r.aCH)}"]
        p=interleave(p,adv,len(p)-8,2)
    o+=x+p
    return o
```

```python
import sys, struct, math
from mainloop import *
import hazard
def f32(x): return "0x%08x" % struct.unpack('<I',struct.pack('<f',x))[0]
LOG2E=math.log2(math.e)
N=12500; E=400000
NCH=250; CH=1600
NPW=196
K1_GRID=NCH+NPW+2
BIAS=4096
WS_P=BIAS; ZROW=12500; W2ROW=12504
WS_R=8<<20; WS_O=14<<20; WS_W1=15<<20; WS_PM=(15<<20)+(1<<17); WS_C=WS_PM+8192; WS_SIZE=16<<20
BM=21475; SM=399997; SA=8191
class A:
    def __init__(s): s.l=[]
    def __call__(s,*xs):
        for x in xs:
            if isinstance(x,(list,tuple)): s(*x); continue
            for y in x.split('\n'):
                y=y.strip()
                if y: s.l.append(y if y.endswith(':') else '    '+y)
    def text(s): return "\n".join(s.l)+"\n"
def srd(a,d,lo,hi,size,off=None,w3=0x20000,stride=0):
    if off is None:
        a(f"s_mov_b32 s{d}, s{lo}"); a(f"s_and_b32 s{d+1}, s{hi}, 0xffff")
    else:
        a(f"s_add_u32 s{d}, s{lo}, {off}"); a(f"s_addc_u32 s{d+1}, s{hi}, 0"); a(f"s_and_b32 s{d+1}, s{d+1}, 0xffff")
    if stride: a(f"s_or_b32 s{d+1}, s{d+1}, {stride<<16}")
    a(f"s_mov_b32 s{d+2}, {size}"); a(f"s_mov_b32 s{d+3}, {hex(w3)}")
def dpp_scan(a, op, regs_, zero_fill=True):
    steps=["row_shr:1 row_mask:0xf bank_mask:0xf bound_ctrl:0","row_shr:2 row_mask:0xf bank_mask:0xf bound_ctrl:0","row_shr:4 row_mask:0xf bank_mask:0xf bound_ctrl:0","row_shr:8 row_mask:0xf bank_mask:0xf bound_ctrl:0",
           "row_bcast:15 row_mask:0xa bank_mask:0xf","row_bcast:31 row_mask:0xc bank_mask:0xf"]
    for st in steps:
        if len(regs_)<3: a(f"s_nop {2-len(regs_)}") if len(regs_)<2 else a("s_nop 0")
        for r_ in regs_: a(f"{op}_dpp v{r_}, v{r_}, v{r_} {st}")
def kd(name, vgpr, sgpr):
    return f""".section .rodata,"a"
.p2align 6
.amdhsa_kernel {name}
  .amdhsa_next_free_vgpr {vgpr}
  .amdhsa_next_free_sgpr {sgpr}
  .amdhsa_accum_offset {(vgpr+3)//4*4}
  .amdhsa_group_segment_fixed_size 0
  .amdhsa_kernarg_size 88
  .amdhsa_user_sgpr_count 2
  .amdhsa_user_sgpr_kernarg_segment_ptr 1
  .amdhsa_system_sgpr_workgroup_id_x 1
.end_amdhsa_kernel
"""
K1_LDS=81920
def stage_w(a, sW, srdq):
    a("v_lshrrev_b32 v2, 5, v1","v_and_b32 v3, 31, v1","v_lshlrev_b32 v4, 2, v2","v_xor_b32 v3, v3, v4","v_lshlrev_b32 v3, 4, v3","v_lshl_add_u32 v3, v2, 9, v3","v_xor_b32 v4, 0x80, v3")
    a(f"s_lshl_b32 s60, s{sW}, 13","s_add_u32 s61, s60, 4096","s_mov_b32 m0, s60","s_nop 0")
    for q in range(8):
        if q==4: a("s_mov_b32 m0, s61","s_nop 0")
        a(f"buffer_load_dwordx4 v{3+(q&1)}, s[{srdq}:{srdq+3}], s{60+(q>>2)} offen offset:{1024*(q&3)} lds")
def bfrag_addr(a, sW):
    a("v_bfe_u32 v2, v1, 2, 2",
      "v_lshrrev_b32 v3, 5, v1",
      "v_lshl_add_u32 v3, v3, 3, v2",
      "v_bfe_u32 v4, v1, 4, 1","v_bfe_u32 v5, v1, 1, 1","v_lshl_add_u32 v4, v4, 1, v5",
      f"s_and_b32 s62, s{sW}, 3","s_lshl_b32 s62, s62, 3","v_add_u32 v4, s62, v4",
      "v_lshlrev_b32 v2, 2, v2","v_xor_b32 v4, v4, v2",
      "v_lshlrev_b32 v4, 4, v4","v_lshl_add_u32 v4, v3, 9, v4",
      "v_and_b32 v2, 1, v1","v_lshl_add_u32 v5, v2, 3, v4","v_xor_b32 v6, 64, v5")
def gen_k1():
    a=A()
    a("mpnn_k1_kernel:")
    a(f"s_cmp_ge_u32 s2, {K1_GRID}","s_cbranch_scc1 K1_END")
    a("s_load_dwordx16 s[4:19], s[0:1], 0","s_load_dwordx2 s[20:21], s[0:1], 80")
    a("v_and_b32 v1, 63, v0","v_lshrrev_b32 v2, 6, v0","s_nop 0","v_readfirstlane_b32 s22, v2")
    a("s_waitcnt lgkmcnt(0)")
    a(f"s_cmp_ge_u32 s2, {NCH}","s_cbranch_scc1 K1_GEMM")
    a(f"s_mul_i32 s23, s2, {CH*4}")
    for d,(lo,hi) in ((24,(10,11)),(28,(8,9))):
        a(f"s_add_u32 s{d}, s{lo}, s23",f"s_addc_u32 s{d+1}, s{hi}, 0",f"s_and_b32 s{d+1}, s{d+1}, 0xffff",f"s_mov_b32 s{d+2}, {CH*4}",f"s_mov_b32 s{d+3}, 0x20000")
    a("s_lshl_b32 s23, s23, 1","s_add_u32 s32, s6, s23","s_addc_u32 s33, s7, 0","s_and_b32 s33, s33, 0xffff",f"s_mov_b32 s34, {CH*8}","s_mov_b32 s35, 0x20000")
    a(f"s_mul_i32 s23, s2, {CH*12}",f"s_add_u32 s23, s23, {WS_R}","s_add_u32 s36, s20, s23","s_addc_u32 s37, s21, 0","s_and_b32 s37, s37, 0xffff",f"s_mov_b32 s38, {CH*12}","s_mov_b32 s39, 0x20000")
    a(f"s_lshl_b32 s23, s2, 10",f"s_add_u32 s23, s23, {WS_O}","s_add_u32 s40, s20, s23","s_addc_u32 s41, s21, 0","s_and_b32 s41, s41, 0xffff","s_mov_b32 s42, 1024","s_mov_b32 s43, 0x20000")
    a("v_lshlrev_b32 v2, 4, v0","v_lshlrev_b32 v3, 5, v0")
    a("buffer_load_dwordx4 v[8:11], v2, s[24:27], 0 offen","buffer_load_dwordx4 v[12:15], v2, s[28:31], 0 offen",
      "buffer_load_dwordx4 v[16:19], v3, s[32:35], 0 offen","buffer_load_dwordx4 v[20:23], v3, s[32:35], 0 offen offset:16")
    a("v_and_b32 v4, 255, v0","v_lshlrev_b32 v4, 2, v4","v_mov_b32 v5, 0","ds_write_b32 v4, v5","v_mov_b32 v6, 1")
    a(f"v_cmp_gt_u32 s[44:45], {CH//4}, v0" if False else f"s_movk_i32 s46, {CH//4}", "v_cmp_gt_u32 s[44:45], s46, v0")
    a(f"s_mov_b32 s47, {BM}",f"s_mov_b32 s48, {SM}",f"v_mov_b32 v7, {SA}")
    a("s_waitcnt lgkmcnt(0)","s_barrier")
    a("s_mov_b64 exec, s[44:45]","s_waitcnt vmcnt(3)")
    for j in range(4): a(f"v_mul_u32_u24 v{24+j}, s47, v{8+j}")
    for j in range(4): a(f"v_lshrrev_b32 v{24+j}, 20, v{24+j}")
    for j in range(4): a(f"v_lshlrev_b32 v{28+j}, 2, v{24+j}")
    for j in range(4): a(f"ds_add_rtn_u32 v{32+j}, v{28+j}, v6")
    for j in range(4): a(f"v_mad_u32_u24 v{24+j}, v{24+j}, s48, v7")
    for j in range(4): a(f"v_lshrrev_b32 v{24+j}, 13, v{24+j}")
    for j in range(4): a(f"v_sub_u32 v{24+j}, v{8+j}, v{24+j}")
    a("s_waitcnt vmcnt(2)")
    for j in range(4): a(f"v_lshl_or_b32 v{24+j}, v{24+j}, 16, v{12+j}")
    a("s_mov_b64 exec, -1","v_lshlrev_b32 v4, 4, v1","s_waitcnt lgkmcnt(0)","s_barrier")
    a("ds_read_b128 v[36:39], v4","s_waitcnt lgkmcnt(0)")
    a("v_add_u32 v41, v36, v37","v_add_u32 v42, v41, v38","v_add_u32 v43, v42, v39","v_mov_b32 v44, v43")
    dpp_scan(a,"v_add_u32",[44])
    a("v_sub_u32 v44, v44, v43","v_add_u32 v45, v44, v36","v_add_u32 v46, v44, v41","v_add_u32 v47, v44, v42")
    a("ds_write_b128 v4, v[44:47] offset:1024")
    a("s_cmp_lg_u32 s22, 7","s_cbranch_scc1 K1_P1")
    for j in range(4): a(f"v_lshl_or_b32 v{48+j}, v{36+j}, 16, v{44+j}")
    a("buffer_store_dwordx4 v[48:51], v4, s[40:43], 0 offen")
    a("K1_P1:")
    a("s_mov_b64 exec, s[44:45]","s_waitcnt lgkmcnt(0)")
    for j in range(4): a(f"ds_read_b32 v{36+j}, v{28+j} offset:1024")
    a("v_mov_b32 v7, 2048","s_waitcnt lgkmcnt(0)")
    for j in range(4): a(f"v_add_u32 v{36+j}, v{36+j}, v{32+j}")
    for j in range(4): a(f"v_mad_u32_u24 v{36+j}, v{36+j}, 12, v7")
    a("s_waitcnt vmcnt(0)")
    for j in range(4):
        a(f"ds_write2_b32 v{36+j}, v{16+2*j}, v{17+2*j} offset0:0 offset1:1",f"ds_write_b32 v{36+j}, v{24+j} offset:8")
    a("s_mov_b64 exec, -1","s_waitcnt lgkmcnt(0)","s_barrier")
    for k in range(3): a(f"ds_read_b128 v[{8+4*k}:{11+4*k}], v2 offset:{2048+8192*k}")
    a("s_movk_i32 s46, 0x2000","s_movk_i32 s47, 0x4000")
    for k in range(3): a(f"s_waitcnt lgkmcnt({2-k})", f"buffer_store_dwordx4 v[{8+4*k}:{11+4*k}], v2, s[36:39], {('0','s46','s47')[k]} offen")
    a("s_endpgm")
    a("K1_GEMM:")
    srd(a,28,20,21,WS_SIZE)
    a(f"s_cmp_ge_u32 s2, {NCH+NPW}","s_cbranch_scc1 K1_PREP")
    srd(a,24,12,13,65536)
    srd(a,32,4,5,N*256)
    srd(a,36,20,21,N*512,off=WS_P)
    stage_w(a,22,24)
    a(f"s_sub_u32 s23, s2, {NCH}")
    a("v_lshrrev_b32 v2, 4, v1","s_and_b32 s62, s22, 1","s_lshl_b32 s62, s62, 3","v_add_u32 v3, s62, v2","v_and_b32 v4, 15, v1","v_xor_b32 v3, v3, v4","v_lshlrev_b32 v3, 4, v3","v_lshl_add_u32 v3, v2, 8, v3","v_xor_b32 v4, 64, v3")
    a("s_lshl_b32 s60, s22, 11","s_add_u32 s61, s60, 65536","s_lshl_b32 s62, s23, 14","s_add_u32 s60, s60, s62","s_mov_b32 m0, s61","s_nop 0")
    a("buffer_load_dwordx4 v3, s[32:35], s60 offen lds","buffer_load_dwordx4 v4, s[32:35], s60 offen offset:1024 lds")
    bfrag_addr(a,22)
    a("v_and_b32 v2, 31, v1","v_lshrrev_b32 v3, 5, v1","v_and_b32 v4, 15, v1","v_xor_b32 v3, v3, v4","v_lshlrev_b32 v3, 4, v3","v_lshl_add_u32 v3, v2, 8, v3",
      "s_lshr_b32 s62, s22, 2","s_lshl_b32 s63, s62, 13","s_add_u32 s63, s63, 65536","v_add_u32 v7, s63, v3")
    for s in range(1,8): a(f"v_xor_b32 v{8+s}, {32*s}, v7")
    a("v_mov_b32 v8, v7")
    a("v_lshrrev_b32 v2, 5, v1","v_and_b32 v3, 31, v1","v_lshlrev_b32 v3, 2, v3","v_lshl_add_u32 v16, v2, 11, v3",
      "s_and_b32 s63, s22, 3","s_lshl_b32 s63, s63, 7","s_lshl_b32 s64, s23, 15","s_lshl_b32 s62, s62, 14","s_add_u32 s64, s64, s62","s_add_u32 s64, s64, s63",
      "s_add_u32 s65, s64, 4096","s_add_u32 s66, s64, 8192","s_add_u32 s67, s64, 12288")
    a(f"s_mov_b32 s70, {f32(-LOG2E)}",f"s_mov_b32 s71, {f32(-LOG2E)}")
    a("s_waitcnt vmcnt(0)","s_barrier")
    AFR=20; BFR=52; ACC=116
    for s in range(8):
        a(f"ds_read_b128 v[{AFR+4*s}:{AFR+4*s+3}], v{8+s}")
        for tt in range(2):
            for u in range(2):
                b=BFR+8*s+4*tt+2*u
                a(f"ds_read_b64_tr_b16 v[{b}:{b+1}], v{5+tt} offset:{(16*s+4*u)*512}")
        if s>=2:
            q=s-2
            a("s_waitcnt lgkmcnt(10)")
            for tt in range(2): a(f"{MF} v[{ACC+16*tt}:{ACC+16*tt+15}], v[{AFR+4*q}:{AFR+4*q+3}], v[{BFR+8*q+4*tt}:{BFR+8*q+4*tt+3}], "+("0" if q==0 else f"v[{ACC+16*tt}:{ACC+16*tt+15}]"))
    for q in (6,7):
        a(f"s_waitcnt lgkmcnt({5*(7-q)})")
        for tt in range(2): a(f"{MF} v[{ACC+16*tt}:{ACC+16*tt+15}], v[{AFR+4*q}:{AFR+4*q+3}], v[{BFR+8*q+4*tt}:{BFR+8*q+4*tt+3}], v[{ACC+16*tt}:{ACC+16*tt+15}]")
    a("v_mov_b32 v17, 0","s_nop 10")
    for i in range(16): a(f"v_pk_mul_f32 v[{ACC+2*i}:{ACC+2*i+1}], v[{ACC+2*i}:{ACC+2*i+1}], s[70:71]")
    for i in range(16):
        a(f"v_cvt_pk_bf16_f32 v{20+i}, v{ACC+i}, v{ACC+16+i}", f"v_max3_f32 v17, |v{ACC+i}|, |v{ACC+16+i}|, v17")
        a(f"buffer_store_dword v{20+i}, v16, s[36:39], s{64+(i>>2)} offen offset:{512*(i&3)}")
    dpp_scan(a,"v_max_u32",[17])
    a("s_lshl_b32 s62, s23, 3","s_add_u32 s62, s62, s22","s_lshl_b32 s62, s62, 2",f"s_add_u32 s62, s62, {WS_PM}")
    a("v_mov_b32 v2, 0","s_mov_b32 exec_lo, 0","s_brev_b32 exec_hi, 1","buffer_store_dword v17, v2, s[28:31], s62 offen")
    a("s_endpgm")
    a("K1_PREP:")
    a(f"s_cmp_eq_u32 s2, {NCH+NPW+1}","s_cbranch_scc1 K1_PREP2")
    srd(a,24,12,13,65536,off=65536)
    stage_w(a,22,24)
    bfrag_addr(a,22)
    a("s_lshr_b32 s62, s22, 2","s_lshl_b32 s63, s62, 6","v_xor_b32 v5, s63, v5")
    a("s_and_b32 s63, s22, 3","s_lshl_b32 s63, s63, 1","s_add_u32 s63, s63, s62","s_lshl_b32 s63, s63, 13",f"s_add_u32 s63, s63, {WS_W1}","s_add_u32 s64, s63, 4096")
    a("v_lshlrev_b32 v7, 4, v1","s_waitcnt vmcnt(0)","s_barrier")
    for s in range(8):
        for u in range(2): a(f"ds_read_b64_tr_b16 v[{20+4*s+2*u}:{21+4*s+2*u}], v5 offset:{(16*s+4*u)*512}")
    a("s_waitcnt lgkmcnt(0)")
    for s in range(8): a(f"buffer_store_dwordx4 v[{20+4*s}:{23+4*s}], v7, s[28:31], s{63+(s>>2)} offen offset:{1024*(s&3)}")
    a("s_endpgm")
    a("K1_PREP2:")
    srd(a,24,16,17,65536)
    srd(a,32,12,13,260*512)
    a("v_lshlrev_b32 v7, 4, v1","s_lshl_b32 s60, s22, 13","s_add_u32 s61, s60, 4096","s_mov_b32 m0, s60","s_nop 0")
    for q in range(8):
        if q==4: a("s_mov_b32 m0, s61","s_nop 0")
        a(f"buffer_load_dwordx4 v7, s[24:27], s{60+(q>>2)} offen offset:{1024*(q&3)} lds")
    a("s_and_b32 s62, s22, 3","s_lshl_b32 s62, s62, 9",f"s_add_u32 s62, s62, {256*512}","v_lshlrev_b32 v2, 3, v1","buffer_load_dwordx2 v[8:9], v2, s[32:35], s62 offen")
    a("v_bfe_u32 v2, v1, 2, 1","v_lshrrev_b32 v3, 5, v1","v_lshlrev_b32 v3, 3, v3","v_lshl_add_u32 v2, v2, 5, v3","v_bfe_u32 v3, v1, 3, 1","v_add_u32 v2, v2, v3",
      "v_bfe_u32 v3, v1, 4, 1","v_and_b32 v4, 3, v1","v_lshlrev_b32 v4, 3, v4","v_lshl_add_u32 v3, v3, 5, v4","v_lshl_add_u32 v5, v2, 8, v3",
      "s_lshr_b32 s62, s22, 1","s_lshl_b32 s62, s62, 6","s_and_b32 s63, s22, 1","s_lshl_b32 s63, s63, 15","s_add_u32 s62, s62, s63","v_add_u32 v5, s62, v5")
    a("v_lshrrev_b32 v2, 3, v1","v_and_b32 v3, 7, v1","v_lshlrev_b32 v3, 4, v3","v_lshl_add_u32 v6, v2, 9, v3",
      "s_lshr_b32 s62, s22, 2","s_lshl_b32 s62, s62, 15","s_and_b32 s63, s22, 3","s_lshl_b32 s63, s63, 7","s_add_u32 s62, s62, s63",f"s_add_u32 s62, s62, {WS_P+W2ROW*512}")
    a("s_waitcnt vmcnt(0)","s_barrier")
    for s8 in range(8):
        for u in range(2):
            lam=64*(s8>>2)+16*((s8>>1)&1)+2*(s8&1)+4*u
            a(f"ds_read_b64_tr_b16 v[{20+4*s8+2*u}:{21+4*s8+2*u}], v5 offset:{lam*256}")
    a("v_lshlrev_b32 v10, 16, v8","v_and_b32 v11, 0xffff0000, v8","v_lshlrev_b32 v12, 16, v9","v_and_b32 v13, 0xffff0000, v9",
      "v_max3_f32 v10, |v10|, |v11|, |v12|","v_max_f32 v10, v10, |v13|" if False else "v_max3_f32 v10, v10, |v13|, |v13|")
    dpp_scan(a,"v_max_u32",[10])
    a(f"v_mul_f32 v10, {f32(LOG2E*1.01)}, v10")
    a("s_waitcnt lgkmcnt(0)")
    for s8 in range(8):
        a(f"buffer_store_dwordx4 v[{20+4*s8}:{23+4*s8}], v6, s[28:31], s62 offen","s_add_u32 s62, s62, 4096")
    a("s_cmp_ge_u32 s22, 4","s_cbranch_scc1 K1_END")
    a("v_mov_b32 v12, 0","v_mov_b32 v13, 0","v_lshlrev_b32 v2, 3, v1",f"s_mov_b32 s63, {WS_P+ZROW*512}","buffer_store_dwordx2 v[12:13], v2, s[28:31], s63 offen")
    a("s_lshl_b32 s62, s22, 2",f"s_add_u32 s62, s62, {WS_C}","s_mov_b32 exec_lo, 0","s_brev_b32 exec_hi, 1","buffer_store_dword v10, v12, s[28:31], s62 offen")
    a("K1_END:","s_endpgm")
    return a.text(), 148, 80

NSLOT=2560
LREC=16*SLOT; LSRC=LREC+NSLOT*16; LCH=LSRC+NSLOT*4; LQI=LCH+NSLOT; LZ=LQI+4*50*192
LCNT=LZ+16; LDEG=LZ+528; LB=LZ+1536; K2_LDS=LZ+1552
LARR=16384
ZOFF=49*192
def gen_k2(dbg=False):
    r=regs(); a=A()
    vENT=r.top; vDEG=r.top+1
    QB=160; QA=192; RK=224; WC=240; B1R=248; PMR=252
    T=r.E
    U=r.AF[0]
    a("mpnn_k2_kernel:")
    a("s_cmp_ge_u32 s2, 256","s_cbranch_scc1 K2_END")
    a("s_load_dwordx16 s[4:19], s[0:1], 0","s_load_dwordx2 s[20:21], s[0:1], 64","s_load_dwordx2 s[22:23], s[0:1], 80")
    a("v_and_b32 v1, 63, v0","v_lshrrev_b32 v2, 6, v0","s_nop 0","v_readfirstlane_b32 s24, v2")
    a(f"s_mul_i32 s27, s2, {SM}",f"s_add_u32 s28, s27, {SM+SA}",f"s_add_u32 s27, s27, {SA}","s_lshr_b32 s27, s27, 13","s_lshr_b32 s28, s28, 13","s_sub_u32 s28, s28, s27")
    a("s_lshr_b32 s25, s24, 2","s_and_b32 s26, s24, 3","s_mov_b32 s29, 0","s_mov_b32 s31, 0")
    a("v_lshrrev_b32 v2, 1, v0","s_lshl_b32 s84, s2, 2","v_lshl_add_u32 v3, v2, 10, s84")
    a("s_waitcnt lgkmcnt(0)")
    srd(a,36,22,23,NCH*1024,off=WS_O)
    a(f"buffer_load_dword v{vENT}, v3, s[36:39], 0 offen")
    srd(a,32,22,23,WS_SIZE)
    srd(a,52,4,5,N*256)
    a(f"s_add_u32 s84, s22, {WS_C}","s_addc_u32 s85, s23, 0","s_load_dwordx4 s[80:83], s[84:85], 0")
    a("v_lshrrev_b32 v2, 4, v1","s_and_b32 s86, s24, 1","s_lshl_b32 s86, s86, 3","v_add_u32 v3, s86, v2",f"v_and_b32 v{T}, 15, v1",f"v_xor_b32 v3, v3, v{T}","v_lshlrev_b32 v3, 4, v3","v_lshl_add_u32 v3, v2, 8, v3","v_xor_b32 v2, 64, v3")
    a("s_lshl_b32 s86, s24, 11","s_lshl_b32 s87, s27, 8","s_add_u32 s87, s87, s86","s_mov_b32 m0, s86","s_nop 0")
    a("buffer_load_dwordx4 v3, s[52:55], s87 offen lds","buffer_load_dwordx4 v2, s[52:55], s87 offen offset:1024 lds")
    a("v_lshlrev_b32 v2, 4, v1","s_lshl_b32 s86, s24, 13",f"s_add_u32 s86, s86, {WS_W1}","s_add_u32 s87, s86, 4096")
    for s in range(8): a(f"buffer_load_dwordx4 v[{QB+4*s}:{QB+4*s+3}], v2, s[32:35], s{86+(s>>2)} offen offset:{1024*(s&3)}")
    srd(a,56,12,13,260*512); srd(a,60,14,15,512); srd(a,64,18,19,256)
    a("v_and_b32 v2, 1, v1","v_bfe_u32 v3, v1, 1, 4","v_lshlrev_b32 v3, 1, v3","v_lshl_add_u32 v2, v2, 6, v3","s_lshl_b32 s86, s26, 7",f"s_add_u32 s86, s86, {256*512}")
    for ct in range(2):
        for k in range(4): a(f"buffer_load_ushort v{WC+4*ct+k}, v2, s[56:59], s86 offen offset:{32*ct+512*k}")
    a("v_and_b32 v2, 31, v1","v_lshlrev_b32 v2, 1, v2","s_lshl_b32 s86, s24, 6",f"buffer_load_ushort v{B1R}, v2, s[60:63], s86 offen")
    a(f"v_min_u32 v2, {NPW*2-1}, v0","v_lshlrev_b32 v2, 4, v2",f"s_mov_b32 s86, {WS_PM}",f"buffer_load_dwordx4 v[{PMR}:{PMR+3}], v2, s[32:35], s86 offen")
    a("s_lshl_b32 s86, s26, 7","s_add_u32 s48, s22, s86","s_addc_u32 s49, s23, 0","s_and_b32 s49, s49, 0xffff","s_or_b32 s49, s49, 0x100000","s_mov_b32 s50, -1","s_mov_b32 s51, 0x800000")
    a("s_mov_b32 s40, 1.0","s_mov_b32 s41, 1.0",f"s_mul_i32 s44, s24, {2*SLOT}",f"s_add_u32 s45, s44, {SLOT}")
    for i in range(32): a(f"v_mov_b32 v{r.S[0]+i}, 0")
    a(f"v_mov_b32 v{vDEG}, 0")
    Z=U
    for i in range(4): a(f"v_mov_b32 v{Z+i}, 0")
    a(f"v_mov_b32 v{T+6}, 0x3f80")
    for rnd in range(2):
        if rnd==0: a(f"v_mov_b32 v{T}, v0")
        else: a(f"v_add_u32 v{T}, 512, v0",f"v_min_u32 v{T}, 799, v{T}")
        a(f"v_lshrrev_b32 v{T+1}, 2, v{T}",f"v_and_b32 v{T+2}, 3, v{T}",
          f"v_mul_u32_u24 v{T+3}, 1311, v{T+1}",f"v_lshrrev_b32 v{T+3}, 16, v{T+3}",f"v_mul_u32_u24 v{T+3}, 50, v{T+3}",f"v_sub_u32 v{T+3}, v{T+1}, v{T+3}",
          f"v_mul_u32_u24 v{T+1}, 192, v{T+1}",f"v_lshl_add_u32 v{T+1}, v{T+2}, 4, v{T+1}",f"v_add_u32 v{T+1}, {LQI+128}, v{T+1}",
          f"ds_write_b128 v{T+1}, v[{Z}:{Z+3}]",
          f"v_subrev_u32 v{T+4}, 25, v{T+3}",f"v_min_u32 v{T+4}, v{T+4}, v{T+3}",
          f"v_lshlrev_b32 v{T+2}, 3, v{T+2}",f"v_sub_u32 v{T+4}, v{T+4}, v{T+2}",
          f"v_cmp_gt_u32 vcc, 8, v{T+4}",f"v_cmp_ne_u32 s[84:85], 49, v{T+3}","s_and_b64 exec, vcc, s[84:85]",
          f"v_lshl_add_u32 v{T+1}, v{T+4}, 1, v{T+1}",f"ds_write_b16 v{T+1}, v{T+6}","s_mov_b64 exec, -1")
    a(f"v_bfe_u32 v{T}, v0, 3, 2",f"v_mul_u32_u24 v{T}, 9600, v{T}",f"v_and_b32 v{T+1}, 7, v0",f"v_lshl_add_u32 v{T}, v{T+1}, 4, v{T}",f"v_add_u32 v{T}, {LQI+ZOFF}, v{T}",f"ds_write_b128 v{T}, v[{Z}:{Z+3}]")
    a(f"v_and_b32 v{T}, 3, v0",f"v_lshlrev_b32 v{T}, 9, v{T}",f"v_add_u32 v{T}, {LZ}, v{T}",f"ds_write_b128 v{T}, v[{Z}:{Z+3}]")
    a(f"v_and_b32 v{T}, 31, v1",f"v_lshrrev_b32 v{T+1}, 5, v1",f"v_lshlrev_b32 v{T+1}, 3, v{T+1}",f"v_sub_u32 v{T}, v{T}, v{T+1}",
      f"v_and_b32 v{T+1}, 1, v1",f"v_lshlrev_b32 v{T+1}, 4, v{T+1}",f"v_lshlrev_b32 v{T+1}, v{T+1}, v{T+6}",f"v_ashrrev_i32 v{T}, 1, v{T}")
    for s in range(2):
        for d in range(4):
            a(f"v_cmp_eq_u32 vcc, {8*s+d}, v{T}","s_nop 1",f"v_cndmask_b32 v{r.BS[s]+d}, 0, v{T+1}, vcc")
    a(f"v_and_b32 v{T}, 1, v1",f"v_bfe_u32 v{T+1}, v1, 4, 1",f"v_lshl_or_b32 v{T}, v{T+1}, 1, v{T}",f"v_bfe_u32 v{T+1}, v1, 2, 1",f"v_lshl_or_b32 v{T}, v{T+1}, 2, v{T}",
      f"v_bfe_u32 v{T+2}, v1, 1, 1",f"v_bfe_u32 v{T+3}, v1, 3, 1",f"v_lshl_or_b32 v{T+2}, v{T+3}, 1, v{T+2}",
      f"v_mul_u32_u24 v{T+3}, {DPAD}, v{T+2}",f"v_lshl_add_u32 v{T+3}, v{T}, 7, v{T+3}",f"v_lshrrev_b32 v{T+4}, 5, v1",f"v_lshl_add_u32 v{T+3}, v{T+4}, 4, v{T+3}",f"v_add_u32 v{r.aA}, s44, v{T+3}",
      f"v_lshl_add_u32 v2, v{T}, 2, v{T+2}","v_lshlrev_b32 v2, 4, v2",
      f"v_cmp_eq_u32 s[42:43], v{T+1}, v{T+4}",f"v_mov_b32 v{T+5}, 1024","s_nop 0",f"v_cndmask_b32 v{r.stREC}, 0, v{T+5}, s[42:43]")
    a(f"v_bfe_u32 v{T}, v1, 4, 1",f"v_and_b32 v{T+1}, 3, v1",f"v_lshlrev_b32 v{T+1}, 3, v{T+1}",f"v_lshl_add_u32 v{T}, v{T}, 5, v{T+1}",f"s_mul_i32 s86, s26, 9600",f"s_add_u32 s86, s86, {LQI}",f"v_add_u32 v{r.cQ}, s86, v{T}")
    a("K2_PASS:")
    for i in range(4): a(f"v_mov_b32 v{Z+i}, 0")
    a(f"v_lshlrev_b32 v{T}, 4, v0",f"v_add_u32 v{T}, {LREC}, v{T}")
    for k in range(5): a(f"ds_write_b128 v{T}, v[{Z}:{Z+3}] offset:{8192*k}")
    a(f"v_and_b32 v{T+1}, 63, v0",f"v_lshlrev_b32 v{T+1}, 2, v{T+1}",f"v_add_u32 v{T+1}, {LCNT}, v{T+1}",f"ds_write_b32 v{T+1}, v{Z}")
    a(f"v_and_b32 v{T+1}, 7, v0",f"v_lshlrev_b32 v{T+1}, 7, v{T+1}",f"v_sub_u32 v{U+4}, {ZROW*512+BIAS}, v{T+1}")
    for j in range(1,4): a(f"v_subrev_u32 v{U+4+j}, {DPAD*j}, v{U+4}")
    a(f"v_add_u32 v{T}, {LSRC-LREC}, v{T}",f"ds_write_b128 v{T}, v[{U+4}:{U+7}]")
    a(f"v_and_b32 v{T+1}, 127, v0",f"v_lshlrev_b32 v{T+2}, 4, v{T+1}",f"v_add_u32 v{T+2}, {LSRC+8192}, v{T+2}",f"ds_write_b128 v{T+2}, v[{U+4}:{U+7}]")
    a(f"v_mov_b32 v{T+3}, {ZOFF}",f"v_lshlrev_b32 v{T+2}, 2, v0",f"v_add_u32 v{T+2}, {LCH}, v{T+2}",f"ds_write_b32 v{T+2}, v{T+3}",
      f"v_lshlrev_b32 v{T+1}, 2, v{T+1}",f"v_add_u32 v{T+1}, {LCH+2048}, v{T+1}",f"ds_write_b32 v{T+1}, v{T+3}")
    a("s_waitcnt vmcnt(20)")
    a(f"v_lshrrev_b32 v{T}, 16, v{vENT}",f"v_and_b32 v{T+1}, 1, v1",f"v_sub_u32 v{T+2}, 1, v{T+1}",f"v_mul_u32_u24 v{T+2}, v{T}, v{T+2}")
    dpp_scan(a,"v_add_u32",[T+2])
    a(f"v_sub_u32 v{T+3}, v{T+2}, v{T}",
      f"v_readlane_b32 s30, v{T+2}, 63",
      f"v_lshrrev_b32 v{T+4}, 1, v0",f"v_mul_u32_u24 v{T+4}, {CH}, v{T+4}",f"v_and_b32 v{T+5}, 0xffff, v{vENT}",f"v_add_u32 v{T+4}, v{T+4}, v{T+5}",f"v_sub_u32 v{T+4}, v{T+4}, v{T+3}",
      f"v_max_u32 v{T+3}, s31, v{T+3}",f"v_add_u32 v{T+3}, v{T+3}, v{T+1}",
      "s_add_u32 s86, s31, 256",f"v_min_u32 v{T+2}, s86, v{T+2}",
      f"s_lshl_b32 s87, s24, 10",f"s_add_u32 s87, s87, {LARR}","s_lshl_b32 s88, s31, 2","s_sub_u32 s88, s87, s88",f"v_lshl_add_u32 v{T+5}, v{T+3}, 2, s88")
    a("K2_EXP:",f"v_cmp_lt_u32 vcc, v{T+3}, v{T+2}","s_and_b64 exec, exec, vcc","s_cbranch_execz K2_EXPD",
      f"ds_write_b32 v{T+5}, v{T+4}",f"v_add_u32 v{T+3}, 2, v{T+3}",f"v_add_u32 v{T+5}, 8, v{T+5}","s_branch K2_EXP","K2_EXPD:","s_mov_b64 exec, -1")
    a(f"v_lshl_add_u32 v{T+5}, v1, 2, s87","s_waitcnt lgkmcnt(0)")
    for k in range(4): a(f"ds_read_b32 v{T+6+k}, v{T+5} offset:{256*k}")
    a(f"v_add_u32 v{T+3}, s31, v1",f"v_bfrev_b32 v{T+4}, 2",f"s_mov_b32 s86, {WS_R}")
    for k in range(4):
        a(f"v_add_u32 v{T+10+k}, {64*k}, v{T+3}",f"v_cmp_gt_u32 s[{72+2*k}:{73+2*k}], s30, v{T+10+k}")
    for k in range(4):
        a(f"s_waitcnt lgkmcnt({3-k})",f"v_add_u32 v{T+10+k}, v{T+10+k}, v{T+6+k}",f"v_mul_u32_u24 v{T+10+k}, 12, v{T+10+k}",f"v_cndmask_b32 v{T+10+k}, v{T+4}, v{T+10+k}, s[{72+2*k}:{73+2*k}]",
          f"buffer_load_dwordx3 v[{RK+4*k}:{RK+4*k+2}], v{T+10+k}, s[32:35], s86 offen")
    a("s_waitcnt vmcnt(4)","s_barrier")
    a("s_cmp_lg_u32 s29, 0","s_cbranch_scc1 K2_NOQ")
    a(f"v_and_b32 v{T}, 31, v1",f"v_lshrrev_b32 v{T+1}, 5, v1",f"v_and_b32 v{T+2}, 15, v1",f"v_xor_b32 v{T+2}, v{T+1}, v{T+2}",f"v_lshlrev_b32 v{T+2}, 4, v{T+2}",f"v_lshl_add_u32 v{U}, v{T}, 8, v{T+2}")
    for s in range(1,8): a(f"v_xor_b32 v{U+s}, {32*s}, v{U}")
    for s in range(8): a(f"ds_read_b128 v[{QA+4*s}:{QA+4*s+3}], v{U+s}")
    a(f"s_mov_b32 s86, {f32(-LOG2E)}",f"s_mov_b32 s87, {f32(-LOG2E)}")
    for i in range(9): a(f"v_lshlrev_b32 v{WC+i}, 16, v{WC+i}")
    for i in range(9): a(f"v_mul_f32 v{WC+i}, s86, v{WC+i}")
    for ct in range(2):
        for m in range(2): a(f"v_cvt_pk_bf16_f32 v{r.BX[ct]+m}, v{WC+4*ct+2*m}, v{WC+4*ct+2*m+1}")
    a(f"v_mov_b32 v{B1R+1}, v{B1R}")
    for s in range(8):
        a(f"s_waitcnt lgkmcnt({7-s})",f"{MF} v[{r.Y[0]}:{r.Y[0]+15}], v[{QA+4*s}:{QA+4*s+3}], v[{QB+4*s}:{QB+4*s+3}], "+("0" if s==0 else f"v[{r.Y[0]}:{r.Y[0]+15}]"))
    for s in range(8): a(f"ds_read_b128 v[{QA+4*s}:{QA+4*s+3}], v{U+s} offset:8192")
    a(f"s_lshr_b32 s88, s24, 1","s_mul_i32 s88, s88, 9600","s_and_b32 s89, s24, 1","s_lshl_b32 s89, s89, 1","s_add_u32 s88, s88, s89",f"s_add_u32 s88, s88, {LQI}",
      f"v_mul_u32_u24 v{T+1}, 768, v{T+1}",f"v_lshl_add_u32 v{T+1}, v{T}, 2, v{T+1}",f"v_add_u32 v{T+1}, s88, v{T+1}")
    a(f"v_max3_u32 v{PMR}, v{PMR}, v{PMR+1}, v{PMR+2}",f"v_max_u32 v{PMR}, v{PMR}, v{PMR+3}",f"v_mov_b32 v{PMR+1}, 0")
    for s in range(8):
        a(f"s_waitcnt lgkmcnt({7-s})",f"{MF} v[{r.Y[1]}:{r.Y[1]+15}], v[{QA+4*s}:{QA+4*s+3}], v[{QB+4*s}:{QB+4*s+3}], "+("0" if s==0 else f"v[{r.Y[1]}:{r.Y[1]+15}]"))
    for nb in range(2):
        Y=r.Y[nb]
        if nb==1: a("s_nop 7")
        nreg=16 if nb==0 else 10
        for m in range(nreg//2):
            a(f"v_fma_f32 v{Y+2*m}, v{Y+2*m}, s86, v{B1R}",f"v_fma_f32 v{Y+2*m+1}, v{Y+2*m+1}, s86, v{B1R}")
            a(f"v_cvt_pk_bf16_f32 v{T+2}, v{Y+2*m}, v{Y+2*m+1}",f"v_max3_f32 v{PMR+1}, |v{Y+2*m}|, |v{Y+2*m+1}|, v{PMR+1}")
            i,j=(2*m)>>2,(2*m)&3
            off=(32*nb+8*i+j)*192
            if nb==1 and m==4:
                a("s_mov_b32 exec_hi, 0",f"ds_write_b16 v{T+1}, v{T+2} offset:{off}","s_mov_b32 exec_hi, -1")
            else:
                a(f"ds_write_b16 v{T+1}, v{T+2} offset:{off}",f"ds_write_b16_d16_hi v{T+1}, v{T+2} offset:{off+192}")
    dpp_scan(a,"v_max_u32",[PMR,PMR+1])
    a("s_add_u32 s88, s30, 255","s_lshr_b32 s88, s88, 8",f"v_mov_b32 v{T+2}, s88",f"v_mov_b32 v{T+3}, {LB}")
    a("s_mov_b32 exec_lo, 0","s_brev_b32 exec_hi, 1",f"ds_max_u32 v{T+3}, v{PMR}",f"ds_max_u32 v{T+3}, v{PMR+1} offset:4",f"ds_max_u32 v{T+3}, v{T+2} offset:12","s_mov_b64 exec, -1")
    a("K2_NOQ:")
    LD=T; RN=T+4; AD=T+8
    a(f"v_mov_b32 v{T+12}, 1",f"v_mov_b32 v{T+13}, {LCNT}",f"v_mov_b32 v{T+14}, 0","s_waitcnt vmcnt(0)")
    for k in range(4):
        a(f"v_bfe_u32 v{LD+k}, v{RK+4*k+2}, 16, 6",f"v_lshl_add_u32 v{AD+k}, v{LD+k}, 2, v{T+13}")
    for k in range(4):
        a(f"s_mov_b64 exec, s[{72+2*k}:{73+2*k}]",f"ds_add_rtn_u32 v{RN+k}, v{AD+k}, v{T+12}")
    a("s_mov_b64 exec, -1")
    for k in range(4):
        a(f"v_lshlrev_b32 v{U}, 16, v{RK+4*k}",f"v_and_b32 v{U+1}, 0xffff0000, v{RK+4*k}",f"v_lshlrev_b32 v{U+2}, 16, v{RK+4*k+1}",f"v_and_b32 v{U+3}, 0xffff0000, v{RK+4*k+1}",
          f"v_mul_f32 v{U}, s80, |v{U}|" if False else f"v_mul_f32_e64 v{U}, |v{U}|, s80",f"v_fma_f32 v{U}, |v{U+1}|, s81, v{U}",f"v_fma_f32 v{U}, |v{U+2}|, s82, v{U}",f"v_fma_f32 v{U}, |v{U+3}|, s83, v{U}",
          f"v_max_u32 v{T+14}, v{T+14}, v{U}")
    dpp_scan(a,"v_max_u32",[T+14])
    a(f"v_mov_b32 v{U}, {LB}","s_mov_b32 exec_lo, 0","s_brev_b32 exec_hi, 1",f"ds_max_u32 v{U}, v{T+14} offset:8","s_mov_b64 exec, -1")
    a(f"v_lshl_add_u32 v{U}, v1, 2, v{T+13}","s_waitcnt lgkmcnt(0)","s_barrier")
    a(f"ds_read_b32 v{U+1}, v{U}",f"v_mov_b32 v{U+8}, {LB}",f"ds_read_b128 v[{U+4}:{U+7}], v{U+8}","s_waitcnt lgkmcnt(1)")
    a(f"v_add_u32 v{vDEG}, v{vDEG}, v{U+1}",f"v_add_u32 v{U+1}, 3, v{U+1}",f"v_lshrrev_b32 v{U+1}, 2, v{U+1}",f"v_mov_b32 v{U+2}, v{U+1}")
    dpp_scan(a,"v_add_u32",[U+2])
    a("s_waitcnt lgkmcnt(0)",f"v_readlane_b32 s86, v{U+2}, 24",f"v_readlane_b32 s87, v{U+2}, 63",f"v_sub_u32 v{U+2}, v{U+2}, v{U+1}")
    a("s_sub_u32 s87, s87, s86","s_add_u32 s87, s87, 7","s_lshr_b32 s87, s87, 3",
      "s_add_u32 s88, s86, 7","s_lshr_b32 s88, s88, 3",
      "s_add_u32 s89, s88, 3","s_lshl_b32 s90, s89, 3","s_sub_u32 s90, s90, s86")
    a(f"v_cmp_lt_u32 vcc, 24, v1",f"v_mov_b32 v{U+1}, s90","s_nop 0",f"v_cndmask_b32 v{U+1}, 0, v{U+1}, vcc",f"v_add_lshl_u32 v{U+2}, v{U+2}, v{U+1}, 2")
    for k in range(4): a(f"v_lshlrev_b32 v{AD+k}, 2, v{LD+k}",f"ds_bpermute_b32 v{AD+k}, v{AD+k}, v{U+2}")
    a(f"v_add_f32 v{U+4}, v{U+4}, v{U+5}",f"v_add_f32 v{U+4}, v{U+4}, v{U+6}","s_cmp_eq_u32 s25, 0","s_cselect_b32 s46, s88, s87","s_cselect_b32 s91, 0, s89",
      f"v_readfirstlane_b32 s92, v{U+4}",f"v_readfirstlane_b32 s47, v{U+7}")
    a(f"v_mov_b32 v{U+8}, 0x3f80",f"v_mov_b32 v{U+9}, 0",f"v_mov_b32 v{U+10}, {LREC}",f"v_mov_b32 v{U+11}, {LSRC}")
    a("s_cmp_ge_u32 s24, 2","s_cbranch_scc1 K2_NOPS")
    a("s_cmp_eq_u32 s24, 0","s_cselect_b32 s93, s88, s87","s_cselect_b32 s94, 0, s89","s_add_u32 s93, s93, 1",
      f"v_lshrrev_b32 v{U+12}, 5, v1",f"v_add_u32 v{U+12}, s93, v{U+12}",f"v_and_b32 v{U+12}, 1, v{U+12}",
      f"v_and_b32 v{U+13}, 3, v1",f"v_bfe_u32 v{U+14}, v1, 2, 3",
      f"v_lshl_add_u32 v{U+12}, v{U+12}, 2, v{U+13}",f"v_lshl_add_u32 v{U+12}, v{U+12}, 3, v{U+14}",f"v_lshlrev_b32 v{U+12}, 9, v{U+12}",
      f"v_mul_u32_u24 v{U+13}, {DPAD}, v{U+13}",f"v_lshl_add_u32 v{U+13}, v{U+14}, 7, v{U+13}",f"v_sub_u32 v{U+12}, v{U+12}, v{U+13}",
      "s_lshl_b32 s95, s24, 15",f"s_add_u32 s95, s95, {W2ROW*512+BIAS}",f"v_add_u32 v{U+12}, s95, v{U+12}",
      "s_add_u32 s93, s93, s94","s_lshl_b32 s93, s93, 7",f"s_add_u32 s93, s93, {LSRC}",f"v_lshl_add_u32 v{U+13}, v1, 2, s93",f"ds_write_b32 v{U+13}, v{U+12}")
    a("K2_NOPS:")
    a("s_waitcnt lgkmcnt(0)")
    for k in range(4):
        sl=AD+k
        a(f"v_add_u32 v{sl}, v{sl}, v{RN+k}",
          f"v_and_b32 v{U+12}, 0x3fff, v{RK+4*k+2}",f"v_lshlrev_b32 v{U+12}, 9, v{U+12}",
          f"v_bfe_u32 v{U+13}, v{sl}, 2, 3",f"v_and_b32 v{U+14}, 3, v{sl}",f"v_mul_u32_u24 v{U+15}, {DPAD}, v{U+14}",f"v_lshl_add_u32 v{U+15}, v{U+13}, 7, v{U+15}",
          f"v_sub_u32 v{U+12}, v{U+12}, v{U+15}",f"v_add_u32 v{U+12}, {BIAS}, v{U+12}",
          f"v_and_b32 v{U+13}, 3, v{U+13}",f"v_lshlrev_b32 v{U+13}, 4, v{U+13}",f"v_lshlrev_b64 v[{RK+4*k+2}:{RK+4*k+3}], v{U+13}, v[{U+8}:{U+9}]",
          f"v_lshl_add_u32 v{U+13}, v{sl}, 4, v{U+10}",f"v_lshl_add_u32 v{U+15}, v{sl}, 2, v{U+11}",
          f"v_cmp_eq_u32 vcc, 0, v{U+14}",f"v_mul_u32_u24 v{LD+k}, 192, v{LD+k}",f"v_add_u32 v{sl}, {LCH}, v{sl}",
          f"s_mov_b64 exec, s[{72+2*k}:{73+2*k}]",
          f"ds_write_b128 v{U+13}, v[{RK+4*k}:{RK+4*k+3}]",f"ds_write_b32 v{U+15}, v{U+12}",
          "s_and_b64 exec, exec, vcc",f"ds_write_b32 v{sl}, v{LD+k}","s_mov_b64 exec, -1")
    a(f"s_lshl_b32 s93, s91, 9",f"s_add_u32 s93, s93, {LREC}",f"v_add_u32 v{U}, s93, v2",f"v_mov_b32 v{U+1}, {LZ}",f"v_cndmask_b32 v{r.aREC}, v{U+1}, v{U}, s[42:43]")
    a(f"s_lshl_b32 s93, s91, 7",f"s_add_u32 s93, s93, {LSRC}",f"v_lshrrev_b32 v{U}, 3, v1",f"v_lshl_add_u32 v{r.aSRC}, v{U}, 4, s93")
    a(f"s_lshl_b32 s93, s91, 5",f"s_add_u32 s93, s93, {LCH}",f"v_bfe_u32 v{U}, v1, 2, 2",f"v_lshrrev_b32 v{U+1}, 5, v1",f"v_lshl_add_u32 v{U}, v{U+1}, 2, v{U}",f"v_lshl_add_u32 v{r.aCH}, v{U}, 2, s93")
    for i in range(4): a(f"v_mov_b32 v{r.OH+i}, 0",f"v_mov_b32 v{r.H[0]+i}, 0",f"v_mov_b32 v{r.H[1]+i}, 0")
    a("s_waitcnt lgkmcnt(0)","s_barrier")
    a(f"ds_read_b128 {v(r.DI,4)}, {v(r.aSRC)}",f"ds_read_b128 {v(r.E,4)}, {v(r.aSRC)} offset:128",f"ds_read_b32 {v(r.chv)}, {v(r.aCH)}","s_mov_b32 m0, s44","s_waitcnt lgkmcnt(2)")
    for j in range(4): a(f"buffer_load_dwordx4 {v(r.DI+j)}, s[48:51], 0 offen offset:{DPAD*j} lds")
    a("s_mov_b32 m0, s45","s_waitcnt lgkmcnt(1)")
    for j in range(4): a(f"buffer_load_dwordx4 {v(r.E+j)}, s[48:51], 0 offen offset:{DPAD*j} lds")
    a("s_waitcnt lgkmcnt(0)",f"v_add_u32 {v(r.aQ[0])}, {v(r.chv)}, {v(r.cQ)}",
      f"ds_read_b128 {v(r.AX,4)}, {v(r.aREC)}",f"ds_read_b64_tr_b16 {v(r.BX[0]+2,2)}, {v(r.aQ[0])}",f"ds_read_b64_tr_b16 {v(r.BX[1]+2,2)}, {v(r.aQ[0])} offset:64",
      f"ds_read_b128 {v(r.DI,4)}, {v(r.aSRC)} offset:256",f"ds_read_b32 {v(r.chv)}, {v(r.aCH)} offset:32","s_waitcnt vmcnt(4)")
    for q in range(4): a(f"ds_read_b128 {v(r.AF[q],4)}, {v(r.aA)} offset:{32*q}")
    a("s_mov_b32 m0, s44","s_waitcnt lgkmcnt(0)")
    a(f"{MF} {v(r.Y[0],16)}, {v(r.AF[0],4)}, {v(r.BS[0],4)}, 0",f"{MF} {v(r.Y[0],16)}, {v(r.AF[1],4)}, {v(r.BS[1],4)}, {v(r.Y[0],16)}",f"{MF} {v(r.Y[0],16)}, {v(r.AX,4)}, {v(r.BX[0],4)}, {v(r.Y[0],16)}")
    for j in range(4): a(f"buffer_load_dwordx4 {v(r.DI+j)}, s[48:51], 0 offen offset:{DPAD*j} lds")
    a("s_cmp_eq_u32 s46, 0","s_cbranch_scc1 K2_DONE")
    a("s_nop 4",f"s_cmp_le_u32 s92, {f32(30.0)}","s_cbranch_scc0 K2_LOOP_S")
    for nm,fast in (("F",True),("S",False)):
        if nm=="F": a(".p2align 6")
        a(f"K2_LOOP_{nm}:")
        a(tile(r,0,fast))
        a("s_sub_u32 s46, s46, 1","s_cmp_eq_u32 s46, 0","s_cbranch_scc1 K2_EXITA")
        a(tile(r,1,fast))
        a("s_sub_u32 s46, s46, 1","s_cmp_lg_u32 s46, 0",f"s_cbranch_scc1 K2_LOOP_{nm}")
        a("s_branch K2_EXITB")
    a("K2_EXITA:",f"v_mov_b32 v{r.OH+2}, 0",f"v_mov_b32 v{r.OH+3}, 0","s_nop 1",f"{MF} {v(r.S[0],16)}, {v(r.H[0],4)}, {v(r.OH,4)}, {v(r.S[0],16)}")
    a("K2_EXITB:","s_nop 1",f"{MF} {v(r.S[1],16)}, {v(r.H[1],4)}, {v(r.OH,4)}, {v(r.S[1],16)}")
    a("K2_DONE:","s_setprio 0","s_add_u32 s29, s29, 1","s_add_u32 s31, s31, 256","s_cmp_lt_u32 s29, s47","s_waitcnt vmcnt(0) lgkmcnt(0)","s_cbranch_scc0 K2_EPI")
    a("s_nop 7","s_barrier","s_branch K2_PASS")
    a("K2_EPI:")
    a("v_and_b32 v3, 31, v1","s_lshl_b32 s86, s26, 6","v_lshlrev_b32 v2, 1, v3",f"buffer_load_ushort v{B1R}, v2, s[64:67], s86 offen")
    a(f"s_mov_b32 s86, {f32(-math.log(2))}",f"s_mov_b32 s87, {f32(-math.log(2))}")
    a(f"v_cvt_f32_u32 v{T}, v{vDEG}",f"v_cmp_lt_u32 vcc, 24, v1",f"v_mov_b32 v{T+1}, 7",f"v_mov_b32 v{T+2}, {LDEG}",f"v_cndmask_b32 v{T+1}, 0, v{T+1}, vcc",f"v_add_u32 v{T+1}, v{T+1}, v1",f"v_min_u32 v{T+1}, 63, v{T+1}",f"v_lshl_add_u32 v{T+1}, v{T+1}, 2, v{T+2}",f"ds_write_b32 v{T+1}, v{T}")
    a(f"v_lshrrev_b32 v{T+3}, 5, v1",f"s_lshl_b32 s88, s25, 5",f"v_add_u32 v{T+4}, s88, v3",f"v_mul_u32_u24 v{T+4}, 528, v{T+4}",f"v_add_u32 v{T+4}, {LREC}, v{T+4}",
      f"s_lshl_b32 s88, s26, 7",f"v_lshl_add_u32 v{T+5}, v{T+3}, 5, s88",f"v_add_u32 v{T+5}, v{T+5}, v{T+4}",
      f"v_lshl_add_u32 v{T+4}, v{T+3}, 4, v{T+4}")
    for i in range(16): a(f"v_pk_mul_f32 v[{r.S[0]+2*i}:{r.S[0]+2*i+1}], v[{r.S[0]+2*i}:{r.S[0]+2*i+1}], s[86:87]")
    for i in range(16): a(f"v_cvt_pk_bf16_f32 v{r.Y[0]+i}, v{r.S[0]+2*i}, v{r.S[0]+2*i+1}")
    a("s_barrier")
    for q in range(4): a(f"ds_write_b128 v{T+5}, v[{r.Y[0]+4*q}:{r.Y[0]+4*q+3}] offset:{64*(q>>1)+16*(q&1)}")
    a(f"s_mul_i32 s88, s26, {4*SLOT}",f"v_lshl_add_u32 v{T+6}, v1, 4, s88")
    a(f"s_lshl_b32 s88, s25, 7",f"s_add_u32 s88, s88, {LDEG}",f"v_lshl_add_u32 v{T+7}, v{T+3}, 4, s88")
    a("s_mul_i32 s88, s25, 25","s_add_u32 s88, s88, s27","s_lshl_b32 s88, s88, 8","s_add_u32 s68, s20, s88","s_addc_u32 s69, s21, 0","s_and_b32 s69, s69, 0xffff",
      "s_sub_u32 s88, s28, 25","s_cmp_eq_u32 s25, 0","s_cselect_b32 s88, 25, s88","s_lshl_b32 s70, s88, 8","s_mov_b32 s71, 0x20000","s_movk_i32 s89, 0x1000")
    a(f"s_lshl_b32 s88, s26, 6",f"v_lshl_add_u32 v{T+8}, v{T+3}, 10, s88",f"v_add_u32 v{T+8}, v{T+8}, v2")
    for s in range(16): a(f"ds_read_b128 v[{QB+4*s}:{QB+4*s+3}], v{T+6} offset:{(s>>3)*2*SLOT+((s>>2)&1)*SLOT+(s&3)*DPAD}")
    a("s_waitcnt vmcnt(0) lgkmcnt(0)",f"v_lshlrev_b32 v{B1R}, 16, v{B1R}","s_barrier")
    for i in range(4): a(f"ds_read_b128 v[{r.Y[1]+4*i}:{r.Y[1]+4*i+3}], v{T+7} offset:{32*i}")
    GA=r.S[0]
    fr=[r.S[0]+4*i for i in range(8)]+[r.Y[0]+4*i for i in range(4)]+[r.AF[i] for i in range(4)]
    for s in range(11): a(f"ds_read_b128 v[{fr[s]}:{fr[s]+3}], v{T+4} offset:{32*s}")
    a("s_waitcnt lgkmcnt(11)")
    for i in range(16): a(f"v_mul_f32 v{r.Y[1]+i}, v{r.Y[1]+i}, v{B1R}")
    for s in range(11,16): a(f"ds_read_b128 v[{fr[s]}:{fr[s]+3}], v{T+4} offset:{32*s}")
    for s in range(16):
        a(f"s_waitcnt lgkmcnt({15-s})",f"{MF} {v(r.Y[1],16)}, v[{fr[s]}:{fr[s]+3}], v[{QB+4*s}:{QB+4*s+3}], {v(r.Y[1],16)}")
    a("s_nop 11")
    for m in range(8):
        i,j=(2*m)>>2,(2*m)&3
        a(f"v_cvt_pk_bf16_f32 v{r.S[0]+m}, v{r.Y[1]+2*m}, v{r.Y[1]+2*m+1}")
        so="0" if i<2 else "s89"; off=((8*i+j)*256)&4095
        a(f"buffer_store_short v{r.S[0]+m}, v{T+8}, s[68:71], {so} offen offset:{off}",f"buffer_store_short_d16_hi v{r.S[0]+m}, v{T+8}, s[68:71], {so} offen offset:{off+256}")
    a("K2_END:","s_endpgm")
    return a.text(), 256, 96
HEADER=open('standalone__edge_featured_mpnn_mpnn__graph.s.ref').read().split('; Override')[0]
def build(fn):
    t1,v1,s1=gen_k1(); t2,v2,s2=gen_k2()
    for nm,t in (('k1',t1),('k2',t2)):
        h=hazard.check(t); print(nm, "\n".join(h) or "no hazards")
    out=HEADER+f"; @launch kernel=mpnn_k1_kernel grid=({K1_GRID},1,1) block=(512,1,1) lds={K1_LDS}\n; @launch kernel=mpnn_k2_kernel grid=(256,1,1) block=(512,1,1) lds={K2_LDS}\n"
    out+='.amdgcn_target "amdgcn-amd-amdhsa--gfx950"\n.text\n'
    for nm,t in (('mpnn_k1_kernel',t1),('mpnn_k2_kernel',t2)):
        out+=f".globl {nm}\n.p2align 8\n.type {nm},@function\n"+t
    out+=kd('mpnn_k1_kernel',v1,s1)+kd('mpnn_k2_kernel',v2,s2)
    open(fn,'w').write(out)
    print("LDS k2",K2_LDS)
if __name__=='__main__':
    build(sys.argv[1] if len(sys.argv)>1 else 'standalone__edge_featured_mpnn_mpnn__graph.s')
```

```python
import sys, struct, math
from mainloop import *
import hazard
def f32(x): return "0x%08x" % struct.unpack('<I',struct.pack('<f',x))[0]
LOG2E=math.log2(math.e)
N=12500; E=400000
NCH=250; CH=1600
NPW=196
K1_GRID=NCH+NPW+2
BIAS=4096
WS_P=BIAS; ZROW=12500; W2ROW=12504
WS_R=8<<20; WS_O=14<<20; WS_W1=15<<20; WS_PM=(15<<20)+(1<<17); WS_C=WS_PM+8192; WS_SIZE=16<<20
BM=21475; SM=399997; SA=8191
class A:
    def __init__(s): s.l=[]
    def __call__(s,*xs):
        for x in xs:
            if isinstance(x,(list,tuple)): s(*x); continue
            for y in x.split('\n'):
                y=y.strip()
                if y: s.l.append(y if y.endswith(':') else '    '+y)
    def text(s): return "\n".join(s.l)+"\n"
def srd(a,d,lo,hi,size,off=None,w3=0x20000,stride=0):
    if off is None:
        a(f"s_mov_b32 s{d}, s{lo}"); a(f"s_and_b32 s{d+1}, s{hi}, 0xffff")
    else:
        a(f"s_add_u32 s{d}, s{lo}, {off}"); a(f"s_addc_u32 s{d+1}, s{hi}, 0"); a(f"s_and_b32 s{d+1}, s{d+1}, 0xffff")
    if stride: a(f"s_or_b32 s{d+1}, s{d+1}, {stride<<16}")
    a(f"s_mov_b32 s{d+2}, {size}"); a(f"s_mov_b32 s{d+3}, {hex(w3)}")
def dpp_scan(a, op, regs_, zero_fill=True):
    steps=["row_shr:1 row_mask:0xf bank_mask:0xf bound_ctrl:0","row_shr:2 row_mask:0xf bank_mask:0xf bound_ctrl:0","row_shr:4 row_mask:0xf bank_mask:0xf bound_ctrl:0","row_shr:8 row_mask:0xf bank_mask:0xf bound_ctrl:0",
           "row_bcast:15 row_mask:0xa bank_mask:0xf","row_bcast:31 row_mask:0xc bank_mask:0xf"]
    for st in steps:
        if len(regs_)<3: a(f"s_nop {2-len(regs_)}") if len(regs_)<2 else a("s_nop 0")
        for r_ in regs_: a(f"{op}_dpp v{r_}, v{r_}, v{r_} {st}")
def kd(name, vgpr, sgpr):
    return f""".section .rodata,"a"
.p2align 6
.amdhsa_kernel {name}
  .amdhsa_next_free_vgpr {vgpr}
  .amdhsa_next_free_sgpr {sgpr}
  .amdhsa_accum_offset {(vgpr+3)//4*4}
  .amdhsa_group_segment_fixed_size 0
  .amdhsa_kernarg_size 88
  .amdhsa_user_sgpr_count 2
  .amdhsa_user_sgpr_kernarg_segment_ptr 1
  .amdhsa_system_sgpr_workgroup_id_x 1
.end_amdhsa_kernel
"""
STAMP=False
WS_ST=24<<20
def stamp(a, sreg):
    if not STAMP: return
    a("s_memrealtime s[100:101]","s_waitcnt lgkmcnt(0)",f"s_mov_b32 s{sreg}, s100")
def stamp_flush(a, wslo, kern, sW, sregs):
    if not STAMP: return
    a("s_waitcnt vmcnt(0)")
    stamp(a, sregs[-1])
    a(f"s_add_u32 s96, s{wslo}, {WS_ST}",f"s_addc_u32 s97, s{wslo+1}, 0","s_and_b32 s97, s97, 0xffff","s_mov_b32 s98, 0x800000","s_mov_b32 s99, 0x20000")
    a(f"s_add_u32 s100, s2, {kern*512}","s_lshl_b32 s100, s100, 3",f"s_add_u32 s100, s100, s{sW}","s_lshl_b32 s100, s100, 6","s_mov_b64 exec, 1","v_mov_b32 v3, 0")
    for q,sr in enumerate(sregs): a(f"v_mov_b32 v2, s{sr}",f"buffer_store_dword v2, v3, s[96:99], s100 offen offset:{4*q}")
K1_LDS=81920
def stage_w(a, sW, srdq):
    a("v_lshrrev_b32 v2, 5, v1","v_and_b32 v3, 31, v1","v_lshlrev_b32 v4, 2, v2","v_xor_b32 v3, v3, v4","v_lshlrev_b32 v3, 4, v3","v_lshl_add_u32 v3, v2, 9, v3","v_xor_b32 v4, 0x80, v3")
    a(f"s_lshl_b32 s60, s{sW}, 13","s_add_u32 s61, s60, 4096","s_mov_b32 m0, s60","s_nop 0")
    for q in range(8):
        if q==4: a("s_mov_b32 m0, s61","s_nop 0")
        a(f"buffer_load_dwordx4 v{3+(q&1)}, s[{srdq}:{srdq+3}], s{60+(q>>2)} offen offset:{1024*(q&3)} lds")
def bfrag_addr(a, sW):
    a("v_bfe_u32 v2, v1, 2, 2",
      "v_lshrrev_b32 v3, 5, v1",
      "v_lshl_add_u32 v3, v3, 3, v2",
      "v_bfe_u32 v4, v1, 4, 1","v_bfe_u32 v5, v1, 1, 1","v_lshl_add_u32 v4, v4, 1, v5",
      f"s_and_b32 s62, s{sW}, 3","s_lshl_b32 s62, s62, 3","v_add_u32 v4, s62, v4",
      "v_lshlrev_b32 v2, 2, v2","v_xor_b32 v4, v4, v2",
      "v_lshlrev_b32 v4, 4, v4","v_lshl_add_u32 v4, v3, 9, v4",
      "v_and_b32 v2, 1, v1","v_lshl_add_u32 v5, v2, 3, v4","v_xor_b32 v6, 64, v5")
def gen_k1():
    a=A()
    a("mpnn_k1_kernel:")
    a(f"s_cmp_ge_u32 s2, {K1_GRID}","s_cbranch_scc1 K1_END")
    stamp(a,72)
    a("s_load_dwordx16 s[4:19], s[0:1], 0","s_load_dwordx2 s[20:21], s[0:1], 80")
    a("v_and_b32 v1, 63, v0","v_lshrrev_b32 v2, 6, v0","s_nop 0","v_readfirstlane_b32 s22, v2")
    a("s_waitcnt lgkmcnt(0)")
    a(f"s_cmp_ge_u32 s2, {NCH}","s_cbranch_scc1 K1_GEMM")
    a(f"s_mul_i32 s23, s2, {CH*4}")
    for d,(lo,hi) in ((24,(10,11)),(28,(8,9))):
        a(f"s_add_u32 s{d}, s{lo}, s23",f"s_addc_u32 s{d+1}, s{hi}, 0",f"s_and_b32 s{d+1}, s{d+1}, 0xffff",f"s_mov_b32 s{d+2}, {CH*4}",f"s_mov_b32 s{d+3}, 0x20000")
    a("s_lshl_b32 s23, s23, 1","s_add_u32 s32, s6, s23","s_addc_u32 s33, s7, 0","s_and_b32 s33, s33, 0xffff",f"s_mov_b32 s34, {CH*8}","s_mov_b32 s35, 0x20000")
    a(f"s_mul_i32 s23, s2, {CH*12}",f"s_add_u32 s23, s23, {WS_R}","s_add_u32 s36, s20, s23","s_addc_u32 s37, s21, 0","s_and_b32 s37, s37, 0xffff",f"s_mov_b32 s38, {CH*12}","s_mov_b32 s39, 0x20000")
    a(f"s_lshl_b32 s23, s2, 10",f"s_add_u32 s23, s23, {WS_O}","s_add_u32 s40, s20, s23","s_addc_u32 s41, s21, 0","s_and_b32 s41, s41, 0xffff","s_mov_b32 s42, 1024","s_mov_b32 s43, 0x20000")
    a("v_lshlrev_b32 v2, 4, v0","v_lshlrev_b32 v3, 5, v0")
    a("buffer_load_dwordx4 v[8:11], v2, s[24:27], 0 offen","buffer_load_dwordx4 v[12:15], v2, s[28:31], 0 offen",
      "buffer_load_dwordx4 v[16:19], v3, s[32:35], 0 offen","buffer_load_dwordx4 v[20:23], v3, s[32:35], 0 offen offset:16")
    a("v_and_b32 v4, 255, v0","v_lshlrev_b32 v4, 2, v4","v_mov_b32 v5, 0","ds_write_b32 v4, v5","v_mov_b32 v6, 1")
    a(f"v_cmp_gt_u32 s[44:45], {CH//4}, v0" if False else f"s_movk_i32 s46, {CH//4}", "v_cmp_gt_u32 s[44:45], s46, v0")
    a(f"s_mov_b32 s47, {BM}",f"s_mov_b32 s48, {SM}",f"v_mov_b32 v7, {SA}")
    a("s_waitcnt lgkmcnt(0)","s_barrier")
    a("s_mov_b64 exec, s[44:45]","s_waitcnt vmcnt(3)")
    stamp(a,73)
    for j in range(4): a(f"v_mul_u32_u24 v{24+j}, s47, v{8+j}")
    for j in range(4): a(f"v_lshrrev_b32 v{24+j}, 20, v{24+j}")
    for j in range(4): a(f"v_lshlrev_b32 v{28+j}, 2, v{24+j}")
    for j in range(4): a(f"ds_add_rtn_u32 v{32+j}, v{28+j}, v6")
    for j in range(4): a(f"v_mad_u32_u24 v{24+j}, v{24+j}, s48, v7")
    for j in range(4): a(f"v_lshrrev_b32 v{24+j}, 13, v{24+j}")
    for j in range(4): a(f"v_sub_u32 v{24+j}, v{8+j}, v{24+j}")
    a("s_waitcnt vmcnt(2)")
    for j in range(4): a(f"v_lshl_or_b32 v{24+j}, v{24+j}, 16, v{12+j}")
    a("s_mov_b64 exec, -1","v_lshlrev_b32 v4, 4, v1","s_waitcnt lgkmcnt(0)","s_barrier")
    stamp(a,74)
    a("ds_read_b128 v[36:39], v4","s_waitcnt lgkmcnt(0)")
    a("v_add_u32 v41, v36, v37","v_add_u32 v42, v41, v38","v_add_u32 v43, v42, v39","v_mov_b32 v44, v43")
    dpp_scan(a,"v_add_u32",[44])
    a("v_sub_u32 v44, v44, v43","v_add_u32 v45, v44, v36","v_add_u32 v46, v44, v41","v_add_u32 v47, v44, v42")
    a("ds_write_b128 v4, v[44:47] offset:1024")
    a("s_cmp_lg_u32 s22, 7","s_cbranch_scc1 K1_P1")
    for j in range(4): a(f"v_lshl_or_b32 v{48+j}, v{36+j}, 16, v{44+j}")
    a("buffer_store_dwordx4 v[48:51], v4, s[40:43], 0 offen")
    a("K1_P1:")
    a("s_mov_b64 exec, s[44:45]","s_waitcnt lgkmcnt(0)")
    for j in range(4): a(f"ds_read_b32 v{36+j}, v{28+j} offset:1024")
    a("v_mov_b32 v7, 2048","s_waitcnt lgkmcnt(0)")
    for j in range(4): a(f"v_add_u32 v{36+j}, v{36+j}, v{32+j}")
    for j in range(4): a(f"v_mad_u32_u24 v{36+j}, v{36+j}, 12, v7")
    a("s_waitcnt vmcnt(0)")
    for j in range(4):
        a(f"ds_write2_b32 v{36+j}, v{16+2*j}, v{17+2*j} offset0:0 offset1:1",f"ds_write_b32 v{36+j}, v{24+j} offset:8")
    a("s_mov_b64 exec, -1","s_waitcnt lgkmcnt(0)","s_barrier")
    stamp(a,75)
    for k in range(3): a(f"ds_read_b128 v[{8+4*k}:{11+4*k}], v2 offset:{2048+8192*k}")
    a("s_movk_i32 s46, 0x2000","s_movk_i32 s47, 0x4000")
    for k in range(3): a(f"s_waitcnt lgkmcnt({2-k})", f"buffer_store_dwordx4 v[{8+4*k}:{11+4*k}], v2, s[36:39], {('0','s46','s47')[k]} offen")
    stamp_flush(a,20,0,22,[72,73,74,75,76])
    a("s_endpgm")
    a("K1_GEMM:")
    srd(a,28,20,21,WS_SIZE)
    a(f"s_cmp_ge_u32 s2, {NCH+NPW}","s_cbranch_scc1 K1_PREP")
    srd(a,24,12,13,65536)
    srd(a,32,4,5,N*256)
    srd(a,36,20,21,N*512,off=WS_P)
    stage_w(a,22,24)
    a(f"s_sub_u32 s23, s2, {NCH}")
    a("v_lshrrev_b32 v2, 4, v1","s_and_b32 s62, s22, 1","s_lshl_b32 s62, s62, 3","v_add_u32 v3, s62, v2","v_and_b32 v4, 15, v1","v_xor_b32 v3, v3, v4","v_lshlrev_b32 v3, 4, v3","v_lshl_add_u32 v3, v2, 8, v3","v_xor_b32 v4, 64, v3")
    a("s_lshl_b32 s60, s22, 11","s_add_u32 s61, s60, 65536","s_lshl_b32 s62, s23, 14","s_add_u32 s60, s60, s62","s_mov_b32 m0, s61","s_nop 0")
    a("buffer_load_dwordx4 v3, s[32:35], s60 offen lds","buffer_load_dwordx4 v4, s[32:35], s60 offen offset:1024 lds")
    bfrag_addr(a,22)
    a("v_and_b32 v2, 31, v1","v_lshrrev_b32 v3, 5, v1","v_and_b32 v4, 15, v1","v_xor_b32 v3, v3, v4","v_lshlrev_b32 v3, 4, v3","v_lshl_add_u32 v3, v2, 8, v3",
      "s_lshr_b32 s62, s22, 2","s_lshl_b32 s63, s62, 13","s_add_u32 s63, s63, 65536","v_add_u32 v7, s63, v3")
    for s in range(1,8): a(f"v_xor_b32 v{8+s}, {32*s}, v7")
    a("v_mov_b32 v8, v7")
    a("v_lshrrev_b32 v2, 5, v1","v_and_b32 v3, 31, v1","v_lshlrev_b32 v3, 2, v3","v_lshl_add_u32 v16, v2, 11, v3",
      "s_and_b32 s63, s22, 3","s_lshl_b32 s63, s63, 7","s_lshl_b32 s64, s23, 15","s_lshl_b32 s62, s62, 14","s_add_u32 s64, s64, s62","s_add_u32 s64, s64, s63",
      "s_add_u32 s65, s64, 4096","s_add_u32 s66, s64, 8192","s_add_u32 s67, s64, 12288")
    a(f"s_mov_b32 s70, {f32(-LOG2E)}",f"s_mov_b32 s71, {f32(-LOG2E)}")
    a("s_waitcnt vmcnt(0)","s_barrier")
    stamp(a,73)
    AFR=20; BFR=52; ACC=84
    for s in range(8):
        a(f"ds_read_b128 v[{AFR+4*s}:{AFR+4*s+3}], v{8+s}")
        for tt in range(2):
            for u in range(2):
                b=BFR+8*(s%4)+4*tt+2*u
                a(f"ds_read_b64_tr_b16 v[{b}:{b+1}], v{5+tt} offset:{(16*s+4*u)*512}")
        if s>=2:
            q=s-2
            a("s_waitcnt lgkmcnt(10)")
            for tt in range(2): a(f"{MF} v[{ACC+16*tt}:{ACC+16*tt+15}], v[{AFR+4*q}:{AFR+4*q+3}], v[{BFR+8*(q%4)+4*tt}:{BFR+8*(q%4)+4*tt+3}], "+("0" if q==0 else f"v[{ACC+16*tt}:{ACC+16*tt+15}]"))
    for q in (6,7):
        a(f"s_waitcnt lgkmcnt({5*(7-q)})")
        for tt in range(2): a(f"{MF} v[{ACC+16*tt}:{ACC+16*tt+15}], v[{AFR+4*q}:{AFR+4*q+3}], v[{BFR+8*(q%4)+4*tt}:{BFR+8*(q%4)+4*tt+3}], v[{ACC+16*tt}:{ACC+16*tt+15}]")
    a("v_mov_b32 v17, 0","s_nop 10")
    stamp(a,74)
    for i in range(16): a(f"v_pk_mul_f32 v[{ACC+2*i}:{ACC+2*i+1}], v[{ACC+2*i}:{ACC+2*i+1}], s[70:71]")
    for i in range(16):
        a(f"v_cvt_pk_bf16_f32 v{20+i}, v{ACC+i}, v{ACC+16+i}", f"v_max3_f32 v17, |v{ACC+i}|, |v{ACC+16+i}|, v17")
        a(f"buffer_store_dword v{20+i}, v16, s[36:39], s{64+(i>>2)} offen offset:{512*(i&3)}")
    dpp_scan(a,"v_max_u32",[17])
    a("s_lshl_b32 s62, s23, 3","s_add_u32 s62, s62, s22","s_lshl_b32 s62, s62, 2",f"s_add_u32 s62, s62, {WS_PM}")
    a("v_mov_b32 v2, 0","s_mov_b32 exec_lo, 0","s_brev_b32 exec_hi, 1","buffer_store_dword v17, v2, s[28:31], s62 offen")
    stamp(a,75)
    stamp_flush(a,20,0,22,[72,73,74,75,76])
    a("s_endpgm")
    a("K1_PREP:")
    a(f"s_cmp_eq_u32 s2, {NCH+NPW+1}","s_cbranch_scc1 K1_PREP2")
    srd(a,24,12,13,65536,off=65536)
    stage_w(a,22,24)
    bfrag_addr(a,22)
    a("s_lshr_b32 s62, s22, 2","s_lshl_b32 s63, s62, 6","v_xor_b32 v5, s63, v5")
    a("s_and_b32 s63, s22, 3","s_lshl_b32 s63, s63, 1","s_add_u32 s63, s63, s62","s_lshl_b32 s63, s63, 13",f"s_add_u32 s63, s63, {WS_W1}","s_add_u32 s64, s63, 4096")
    a("v_lshlrev_b32 v7, 4, v1","s_waitcnt vmcnt(0)","s_barrier")
    for s in range(8):
        for u in range(2): a(f"ds_read_b64_tr_b16 v[{20+4*s+2*u}:{21+4*s+2*u}], v5 offset:{(16*s+4*u)*512}")
    a("s_waitcnt lgkmcnt(0)")
    for s in range(8): a(f"buffer_store_dwordx4 v[{20+4*s}:{23+4*s}], v7, s[28:31], s{63+(s>>2)} offen offset:{1024*(s&3)}")
    a("s_endpgm")
    a("K1_PREP2:")
    srd(a,24,16,17,65536)
    srd(a,32,12,13,260*512)
    a("v_lshlrev_b32 v7, 4, v1","s_lshl_b32 s60, s22, 13","s_add_u32 s61, s60, 4096","s_mov_b32 m0, s60","s_nop 0")
    for q in range(8):
        if q==4: a("s_mov_b32 m0, s61","s_nop 0")
        a(f"buffer_load_dwordx4 v7, s[24:27], s{60+(q>>2)} offen offset:{1024*(q&3)} lds")
    a("s_and_b32 s62, s22, 3","s_lshl_b32 s62, s62, 9",f"s_add_u32 s62, s62, {256*512}","v_lshlrev_b32 v2, 3, v1","buffer_load_dwordx2 v[8:9], v2, s[32:35], s62 offen")
    a("v_bfe_u32 v2, v1, 2, 1","v_lshrrev_b32 v3, 5, v1","v_lshlrev_b32 v3, 3, v3","v_lshl_add_u32 v2, v2, 5, v3","v_bfe_u32 v3, v1, 3, 1","v_add_u32 v2, v2, v3",
      "v_bfe_u32 v3, v1, 4, 1","v_and_b32 v4, 3, v1","v_lshlrev_b32 v4, 3, v4","v_lshl_add_u32 v3, v3, 5, v4","v_lshl_add_u32 v5, v2, 8, v3",
      "s_lshr_b32 s62, s22, 1","s_lshl_b32 s62, s62, 6","s_and_b32 s63, s22, 1","s_lshl_b32 s63, s63, 15","s_add_u32 s62, s62, s63","v_add_u32 v5, s62, v5")
    a("v_lshrrev_b32 v2, 3, v1","v_and_b32 v3, 7, v1","v_lshlrev_b32 v3, 4, v3","v_lshl_add_u32 v6, v2, 9, v3",
      "s_lshr_b32 s62, s22, 2","s_lshl_b32 s62, s62, 15","s_and_b32 s63, s22, 3","s_lshl_b32 s63, s63, 7","s_add_u32 s62, s62, s63",f"s_add_u32 s62, s62, {WS_P+W2ROW*512}")
    a("s_waitcnt vmcnt(0)","s_barrier")
    for s8 in range(8):
        for u in range(2):
            lam=64*(s8>>2)+16*((s8>>1)&1)+2*(s8&1)+4*u
            a(f"ds_read_b64_tr_b16 v[{20+4*s8+2*u}:{21+4*s8+2*u}], v5 offset:{lam*256}")
    a("v_lshlrev_b32 v10, 16, v8","v_and_b32 v11, 0xffff0000, v8","v_lshlrev_b32 v12, 16, v9","v_and_b32 v13, 0xffff0000, v9",
      "v_max3_f32 v10, |v10|, |v11|, |v12|","v_max_f32 v10, v10, |v13|" if False else "v_max3_f32 v10, v10, |v13|, |v13|")
    dpp_scan(a,"v_max_u32",[10])
    a(f"v_mul_f32 v10, {f32(LOG2E*1.01)}, v10")
    a("s_waitcnt lgkmcnt(0)")
    for s8 in range(8):
        a(f"buffer_store_dwordx4 v[{20+4*s8}:{23+4*s8}], v6, s[28:31], s62 offen","s_add_u32 s62, s62, 4096")
    a("s_cmp_ge_u32 s22, 4","s_cbranch_scc1 K1_END")
    a("v_mov_b32 v12, 0","v_mov_b32 v13, 0","v_lshlrev_b32 v2, 3, v1",f"s_mov_b32 s63, {WS_P+ZROW*512}","buffer_store_dwordx2 v[12:13], v2, s[28:31], s63 offen")
    a("s_lshl_b32 s62, s22, 2",f"s_add_u32 s62, s62, {WS_C}","s_mov_b32 exec_lo, 0","s_brev_b32 exec_hi, 1","buffer_store_dword v10, v12, s[28:31], s62 offen")
    a("K1_END:","s_endpgm")
    return a.text(), 116, (102 if STAMP else 80)

NSLOT=2560
LREC=16*SLOT; LSRC=LREC+NSLOT*16; LCH=LSRC+NSLOT*4; LQI=LCH+NSLOT; LZ=LQI+4*50*192
LCNT=LZ+16; LDEG=LZ+528; LB=LZ+1536; K2_LDS=LZ+1552
LARR=16384
ZOFF=49*192
def gen_k2(dbg=False):
    r=regs(); a=A()
    vENT=r.top; vDEG=r.top+1
    QB=160; QA=192; RK=224; WC=240; B1R=248; PMR=252
    T=r.E
    U=r.AF[0]
    a("mpnn_k2_kernel:")
    a("s_cmp_ge_u32 s2, 256","s_cbranch_scc1 K2_END")
    stamp(a,3)
    a("s_load_dwordx16 s[4:19], s[0:1], 0","s_load_dwordx2 s[20:21], s[0:1], 64","s_load_dwordx2 s[22:23], s[0:1], 80")
    a("v_and_b32 v1, 63, v0","v_lshrrev_b32 v2, 6, v0","s_nop 0","v_readfirstlane_b32 s24, v2")
    a(f"s_mul_i32 s27, s2, {SM}",f"s_add_u32 s28, s27, {SM+SA}",f"s_add_u32 s27, s27, {SA}","s_lshr_b32 s27, s27, 13","s_lshr_b32 s28, s28, 13","s_sub_u32 s28, s28, s27")
    a("s_lshr_b32 s25, s24, 2","s_and_b32 s26, s24, 3","s_mov_b32 s29, 0","s_mov_b32 s31, 0")
    a("v_lshrrev_b32 v2, 1, v0","s_lshl_b32 s84, s2, 2","v_lshl_add_u32 v3, v2, 10, s84")
    a("s_waitcnt lgkmcnt(0)")
    srd(a,36,22,23,NCH*1024,off=WS_O)
    a(f"buffer_load_dword v{vENT}, v3, s[36:39], 0 offen")
    srd(a,32,22,23,WS_SIZE)
    srd(a,52,4,5,N*256)
    a(f"s_add_u32 s84, s22, {WS_C}","s_addc_u32 s85, s23, 0","s_load_dwordx4 s[80:83], s[84:85], 0")
    a("v_lshrrev_b32 v2, 4, v1","s_and_b32 s86, s24, 1","s_lshl_b32 s86, s86, 3","v_add_u32 v3, s86, v2",f"v_and_b32 v{T}, 15, v1",f"v_xor_b32 v3, v3, v{T}","v_lshlrev_b32 v3, 4, v3","v_lshl_add_u32 v3, v2, 8, v3","v_xor_b32 v2, 64, v3")
    a("s_lshl_b32 s86, s24, 11","s_lshl_b32 s87, s27, 8","s_add_u32 s87, s87, s86","s_mov_b32 m0, s86","s_nop 0")
    a("buffer_load_dwordx4 v3, s[52:55], s87 offen lds","buffer_load_dwordx4 v2, s[52:55], s87 offen offset:1024 lds")
    a("v_lshlrev_b32 v2, 4, v1","s_lshl_b32 s86, s24, 13",f"s_add_u32 s86, s86, {WS_W1}","s_add_u32 s87, s86, 4096")
    for s in range(8): a(f"buffer_load_dwordx4 v[{QB+4*s}:{QB+4*s+3}], v2, s[32:35], s{86+(s>>2)} offen offset:{1024*(s&3)}")
    srd(a,56,12,13,260*512); srd(a,60,14,15,512); srd(a,64,18,19,256)
    a("v_and_b32 v2, 1, v1","v_bfe_u32 v3, v1, 1, 4","v_lshlrev_b32 v3, 1, v3","v_lshl_add_u32 v2, v2, 6, v3","s_lshl_b32 s86, s26, 7",f"s_add_u32 s86, s86, {256*512}")
    for ct in range(2):
        for k in range(4): a(f"buffer_load_ushort v{WC+4*ct+k}, v2, s[56:59], s86 offen offset:{32*ct+512*k}")
    a("v_and_b32 v2, 31, v1","v_lshlrev_b32 v2, 1, v2","s_lshl_b32 s86, s24, 6",f"buffer_load_ushort v{B1R}, v2, s[60:63], s86 offen")
    a(f"v_min_u32 v2, {NPW*2-1}, v0","v_lshlrev_b32 v2, 4, v2",f"s_mov_b32 s86, {WS_PM}",f"buffer_load_dwordx4 v[{PMR}:{PMR+3}], v2, s[32:35], s86 offen")
    a("s_lshl_b32 s86, s26, 7","s_add_u32 s48, s22, s86","s_addc_u32 s49, s23, 0","s_and_b32 s49, s49, 0xffff","s_or_b32 s49, s49, 0x100000","s_mov_b32 s50, -1","s_mov_b32 s51, 0x800000")
    a("s_mov_b32 s40, 1.0","s_mov_b32 s41, 1.0",f"s_mul_i32 s44, s24, {2*SLOT}",f"s_add_u32 s45, s44, {SLOT}")
    for i in range(32): a(f"v_mov_b32 v{r.S[0]+i}, 0")
    a(f"v_mov_b32 v{vDEG}, 0")
    Z=U
    for i in range(4): a(f"v_mov_b32 v{Z+i}, 0")
    a(f"v_mov_b32 v{T+6}, 0x3f80")
    for rnd in range(2):
        if rnd==0: a(f"v_mov_b32 v{T}, v0")
        else: a(f"v_add_u32 v{T}, 512, v0",f"v_min_u32 v{T}, 799, v{T}")
        a(f"v_lshrrev_b32 v{T+1}, 2, v{T}",f"v_and_b32 v{T+2}, 3, v{T}",
          f"v_mul_u32_u24 v{T+3}, 1311, v{T+1}",f"v_lshrrev_b32 v{T+3}, 16, v{T+3}",f"v_mul_u32_u24 v{T+3}, 50, v{T+3}",f"v_sub_u32 v{T+3}, v{T+1}, v{T+3}",
          f"v_mul_u32_u24 v{T+1}, 192, v{T+1}",f"v_lshl_add_u32 v{T+1}, v{T+2}, 4, v{T+1}",f"v_add_u32 v{T+1}, {LQI+128}, v{T+1}",
          f"ds_write_b128 v{T+1}, v[{Z}:{Z+3}]",
          f"v_subrev_u32 v{T+4}, 25, v{T+3}",f"v_min_u32 v{T+4}, v{T+4}, v{T+3}",
          f"v_lshlrev_b32 v{T+2}, 3, v{T+2}",f"v_sub_u32 v{T+4}, v{T+4}, v{T+2}",
          f"v_cmp_gt_u32 vcc, 8, v{T+4}",f"v_cmp_ne_u32 s[84:85], 49, v{T+3}","s_and_b64 exec, vcc, s[84:85]",
          f"v_lshl_add_u32 v{T+1}, v{T+4}, 1, v{T+1}",f"ds_write_b16 v{T+1}, v{T+6}","s_mov_b64 exec, -1")
    a(f"v_bfe_u32 v{T}, v0, 3, 2",f"v_mul_u32_u24 v{T}, 9600, v{T}",f"v_and_b32 v{T+1}, 7, v0",f"v_lshl_add_u32 v{T}, v{T+1}, 4, v{T}",f"v_add_u32 v{T}, {LQI+ZOFF}, v{T}",f"ds_write_b128 v{T}, v[{Z}:{Z+3}]")
    a(f"v_and_b32 v{T}, 3, v0",f"v_lshlrev_b32 v{T}, 9, v{T}",f"v_add_u32 v{T}, {LZ}, v{T}",f"ds_write_b128 v{T}, v[{Z}:{Z+3}]")
    a(f"v_and_b32 v{T}, 31, v1",f"v_lshrrev_b32 v{T+1}, 5, v1",f"v_lshlrev_b32 v{T+1}, 3, v{T+1}",f"v_sub_u32 v{T}, v{T}, v{T+1}",
      f"v_and_b32 v{T+1}, 1, v1",f"v_lshlrev_b32 v{T+1}, 4, v{T+1}",f"v_lshlrev_b32 v{T+1}, v{T+1}, v{T+6}",f"v_ashrrev_i32 v{T}, 1, v{T}")
    for s in range(2):
        for d in range(4):
            a(f"v_cmp_eq_u32 vcc, {8*s+d}, v{T}","s_nop 1",f"v_cndmask_b32 v{r.BS[s]+d}, 0, v{T+1}, vcc")
    a(f"v_and_b32 v{T}, 1, v1",f"v_bfe_u32 v{T+1}, v1, 4, 1",f"v_lshl_or_b32 v{T}, v{T+1}, 1, v{T}",f"v_bfe_u32 v{T+1}, v1, 2, 1",f"v_lshl_or_b32 v{T}, v{T+1}, 2, v{T}",
      f"v_bfe_u32 v{T+2}, v1, 1, 1",f"v_bfe_u32 v{T+3}, v1, 3, 1",f"v_lshl_or_b32 v{T+2}, v{T+3}, 1, v{T+2}",
      f"v_mul_u32_u24 v{T+3}, {DPAD}, v{T+2}",f"v_lshl_add_u32 v{T+3}, v{T}, 7, v{T+3}",f"v_lshrrev_b32 v{T+4}, 5, v1",f"v_lshl_add_u32 v{T+3}, v{T+4}, 4, v{T+3}",f"v_add_u32 v{r.aA}, s44, v{T+3}",
      f"v_lshl_add_u32 v2, v{T}, 2, v{T+2}","v_lshlrev_b32 v2, 4, v2",
      f"v_cmp_eq_u32 s[42:43], v{T+1}, v{T+4}",f"v_mov_b32 v{T+5}, 1024","s_nop 0",f"v_cndmask_b32 v{r.stREC}, 0, v{T+5}, s[42:43]")
    a(f"v_bfe_u32 v{T}, v1, 4, 1",f"v_and_b32 v{T+1}, 3, v1",f"v_lshlrev_b32 v{T+1}, 3, v{T+1}",f"v_lshl_add_u32 v{T}, v{T}, 5, v{T+1}",f"s_mul_i32 s86, s26, 9600",f"s_add_u32 s86, s86, {LQI}",f"v_add_u32 v{r.cQ}, s86, v{T}")
    a("K2_PASS:")
    for i in range(4): a(f"v_mov_b32 v{Z+i}, 0")
    a(f"v_lshlrev_b32 v{T}, 4, v0",f"v_add_u32 v{T}, {LREC}, v{T}")
    for k in range(5): a(f"ds_write_b128 v{T}, v[{Z}:{Z+3}] offset:{8192*k}")
    a(f"v_and_b32 v{T+1}, 63, v0",f"v_lshlrev_b32 v{T+1}, 2, v{T+1}",f"v_add_u32 v{T+1}, {LCNT}, v{T+1}",f"ds_write_b32 v{T+1}, v{Z}")
    a(f"v_and_b32 v{T+1}, 7, v0",f"v_lshlrev_b32 v{T+1}, 7, v{T+1}",f"v_sub_u32 v{U+4}, {ZROW*512+BIAS}, v{T+1}")
    for j in range(1,4): a(f"v_subrev_u32 v{U+4+j}, {DPAD*j}, v{U+4}")
    a(f"v_add_u32 v{T}, {LSRC-LREC}, v{T}",f"ds_write_b128 v{T}, v[{U+4}:{U+7}]")
    a(f"v_and_b32 v{T+1}, 127, v0",f"v_lshlrev_b32 v{T+2}, 4, v{T+1}",f"v_add_u32 v{T+2}, {LSRC+8192}, v{T+2}",f"ds_write_b128 v{T+2}, v[{U+4}:{U+7}]")
    a(f"v_mov_b32 v{T+3}, {ZOFF}",f"v_lshlrev_b32 v{T+2}, 2, v0",f"v_add_u32 v{T+2}, {LCH}, v{T+2}",f"ds_write_b32 v{T+2}, v{T+3}",
      f"v_lshlrev_b32 v{T+1}, 2, v{T+1}",f"v_add_u32 v{T+1}, {LCH+2048}, v{T+1}",f"ds_write_b32 v{T+1}, v{T+3}")
    stamp(a,4)
    a("s_waitcnt vmcnt(20)")
    stamp(a,5)
    a(f"v_lshrrev_b32 v{T}, 16, v{vENT}",f"v_and_b32 v{T+1}, 1, v1",f"v_sub_u32 v{T+2}, 1, v{T+1}",f"v_mul_u32_u24 v{T+2}, v{T}, v{T+2}")
    dpp_scan(a,"v_add_u32",[T+2])
    a(f"v_sub_u32 v{T+3}, v{T+2}, v{T}",
      f"v_readlane_b32 s30, v{T+2}, 63",
      f"v_lshrrev_b32 v{T+4}, 1, v0",f"v_mul_u32_u24 v{T+4}, {CH}, v{T+4}",f"v_and_b32 v{T+5}, 0xffff, v{vENT}",f"v_add_u32 v{T+4}, v{T+4}, v{T+5}",f"v_sub_u32 v{T+4}, v{T+4}, v{T+3}",
      f"v_max_u32 v{T+3}, s31, v{T+3}",f"v_add_u32 v{T+3}, v{T+3}, v{T+1}",
      "s_add_u32 s86, s31, 256",f"v_min_u32 v{T+2}, s86, v{T+2}",
      f"s_lshl_b32 s87, s24, 10",f"s_add_u32 s87, s87, {LARR}","s_lshl_b32 s88, s31, 2","s_sub_u32 s88, s87, s88",f"v_lshl_add_u32 v{T+5}, v{T+3}, 2, s88")
    a("K2_EXP:",f"v_cmp_lt_u32 vcc, v{T+3}, v{T+2}","s_and_b64 exec, exec, vcc","s_cbranch_execz K2_EXPD",
      f"ds_write_b32 v{T+5}, v{T+4}",f"v_add_u32 v{T+3}, 2, v{T+3}",f"v_add_u32 v{T+5}, 8, v{T+5}","s_branch K2_EXP","K2_EXPD:","s_mov_b64 exec, -1")
    a(f"v_lshl_add_u32 v{T+5}, v1, 2, s87","s_waitcnt lgkmcnt(0)")
    for k in range(4): a(f"ds_read_b32 v{T+6+k}, v{T+5} offset:{256*k}")
    a(f"v_add_u32 v{T+3}, s31, v1",f"v_bfrev_b32 v{T+4}, 2",f"s_mov_b32 s86, {WS_R}")
    for k in range(4):
        a(f"v_add_u32 v{T+10+k}, {64*k}, v{T+3}",f"v_cmp_gt_u32 s[{72+2*k}:{73+2*k}], s30, v{T+10+k}")
    for k in range(4):
        a(f"s_waitcnt lgkmcnt({3-k})",f"v_add_u32 v{T+10+k}, v{T+10+k}, v{T+6+k}",f"v_mul_u32_u24 v{T+10+k}, 12, v{T+10+k}",f"v_cndmask_b32 v{T+10+k}, v{T+4}, v{T+10+k}, s[{72+2*k}:{73+2*k}]",
          f"buffer_load_dwordx3 v[{RK+4*k}:{RK+4*k+2}], v{T+10+k}, s[32:35], s86 offen")
    stamp(a,6)
    a("s_waitcnt vmcnt(4)","s_barrier")
    stamp(a,7)
    a("s_cmp_lg_u32 s29, 0","s_cbranch_scc1 K2_NOQ")
    a(f"v_and_b32 v{T}, 31, v1",f"v_lshrrev_b32 v{T+1}, 5, v1",f"v_and_b32 v{T+2}, 15, v1",f"v_xor_b32 v{T+2}, v{T+1}, v{T+2}",f"v_lshlrev_b32 v{T+2}, 4, v{T+2}",f"v_lshl_add_u32 v{U}, v{T}, 8, v{T+2}")
    for s in range(1,8): a(f"v_xor_b32 v{U+s}, {32*s}, v{U}")
    for s in range(8): a(f"ds_read_b128 v[{QA+4*s}:{QA+4*s+3}], v{U+s}")
    a(f"s_mov_b32 s86, {f32(-LOG2E)}",f"s_mov_b32 s87, {f32(-LOG2E)}")
    for i in range(9): a(f"v_lshlrev_b32 v{WC+i}, 16, v{WC+i}")
    for i in range(9): a(f"v_mul_f32 v{WC+i}, s86, v{WC+i}")
    for ct in range(2):
        for m in range(2): a(f"v_cvt_pk_bf16_f32 v{r.BX[ct]+m}, v{WC+4*ct+2*m}, v{WC+4*ct+2*m+1}")
    a(f"v_mov_b32 v{B1R+1}, v{B1R}")
    for s in range(8):
        a(f"s_waitcnt lgkmcnt({7-s})",f"{MF} v[{r.Y[0]}:{r.Y[0]+15}], v[{QA+4*s}:{QA+4*s+3}], v[{QB+4*s}:{QB+4*s+3}], "+("0" if s==0 else f"v[{r.Y[0]}:{r.Y[0]+15}]"))
    for s in range(8): a(f"ds_read_b128 v[{QA+4*s}:{QA+4*s+3}], v{U+s} offset:8192")
    a(f"s_lshr_b32 s88, s24, 1","s_mul_i32 s88, s88, 9600","s_and_b32 s89, s24, 1","s_lshl_b32 s89, s89, 1","s_add_u32 s88, s88, s89",f"s_add_u32 s88, s88, {LQI}",
      f"v_mul_u32_u24 v{T+1}, 768, v{T+1}",f"v_lshl_add_u32 v{T+1}, v{T}, 2, v{T+1}",f"v_add_u32 v{T+1}, s88, v{T+1}")
    a(f"v_max3_u32 v{PMR}, v{PMR}, v{PMR+1}, v{PMR+2}",f"v_max_u32 v{PMR}, v{PMR}, v{PMR+3}",f"v_mov_b32 v{PMR+1}, 0")
    for s in range(8):
        a(f"s_waitcnt lgkmcnt({7-s})",f"{MF} v[{r.Y[1]}:{r.Y[1]+15}], v[{QA+4*s}:{QA+4*s+3}], v[{QB+4*s}:{QB+4*s+3}], "+("0" if s==0 else f"v[{r.Y[1]}:{r.Y[1]+15}]"))
    for nb in range(2):
        Y=r.Y[nb]
        if nb==1: a("s_nop 7")
        nreg=16 if nb==0 else 10
        for m in range(nreg//2):
            a(f"v_fma_f32 v{Y+2*m}, v{Y+2*m}, s86, v{B1R}",f"v_fma_f32 v{Y+2*m+1}, v{Y+2*m+1}, s86, v{B1R}")
            a(f"v_cvt_pk_bf16_f32 v{T+2}, v{Y+2*m}, v{Y+2*m+1}",f"v_max3_f32 v{PMR+1}, |v{Y+2*m}|, |v{Y+2*m+1}|, v{PMR+1}")
            i,j=(2*m)>>2,(2*m)&3
            off=(32*nb+8*i+j)*192
            if nb==1 and m==4:
                a("s_mov_b32 exec_hi, 0",f"ds_write_b16 v{T+1}, v{T+2} offset:{off}","s_mov_b32 exec_hi, -1")
            else:
                a(f"ds_write_b16 v{T+1}, v{T+2} offset:{off}",f"ds_write_b16_d16_hi v{T+1}, v{T+2} offset:{off+192}")
    dpp_scan(a,"v_max_u32",[PMR,PMR+1])
    a("s_add_u32 s88, s30, 255","s_lshr_b32 s88, s88, 8",f"v_mov_b32 v{T+2}, s88",f"v_mov_b32 v{T+3}, {LB}")
    a("s_mov_b32 exec_lo, 0","s_brev_b32 exec_hi, 1",f"ds_max_u32 v{T+3}, v{PMR}",f"ds_max_u32 v{T+3}, v{PMR+1} offset:4",f"ds_max_u32 v{T+3}, v{T+2} offset:12","s_mov_b64 exec, -1")
    a("K2_NOQ:")
    LD=T; RN=T+4; AD=T+8
    a(f"v_mov_b32 v{T+12}, 1",f"v_mov_b32 v{T+13}, {LCNT}",f"v_mov_b32 v{T+14}, 0")
    stamp(a,8)
    a("s_waitcnt vmcnt(0)")
    stamp(a,9)
    for k in range(4):
        a(f"v_bfe_u32 v{LD+k}, v{RK+4*k+2}, 16, 6",f"v_lshl_add_u32 v{AD+k}, v{LD+k}, 2, v{T+13}")
    for k in range(4):
        a(f"s_mov_b64 exec, s[{72+2*k}:{73+2*k}]",f"ds_add_rtn_u32 v{RN+k}, v{AD+k}, v{T+12}")
    a("s_mov_b64 exec, -1")
    for k in range(4):
        a(f"v_lshlrev_b32 v{U}, 16, v{RK+4*k}",f"v_and_b32 v{U+1}, 0xffff0000, v{RK+4*k}",f"v_lshlrev_b32 v{U+2}, 16, v{RK+4*k+1}",f"v_and_b32 v{U+3}, 0xffff0000, v{RK+4*k+1}",
          f"v_mul_f32 v{U}, s80, |v{U}|" if False else f"v_mul_f32_e64 v{U}, |v{U}|, s80",f"v_fma_f32 v{U}, |v{U+1}|, s81, v{U}",f"v_fma_f32 v{U}, |v{U+2}|, s82, v{U}",f"v_fma_f32 v{U}, |v{U+3}|, s83, v{U}",
          f"v_max_u32 v{T+14}, v{T+14}, v{U}")
    dpp_scan(a,"v_max_u32",[T+14])
    a(f"v_mov_b32 v{U}, {LB}","s_mov_b32 exec_lo, 0","s_brev_b32 exec_hi, 1",f"ds_max_u32 v{U}, v{T+14} offset:8","s_mov_b64 exec, -1")
    a(f"v_lshl_add_u32 v{U}, v1, 2, v{T+13}","s_waitcnt lgkmcnt(0)","s_barrier")
    stamp(a,10)
    a(f"ds_read_b32 v{U+1}, v{U}",f"v_mov_b32 v{U+8}, {LB}",f"ds_read_b128 v[{U+4}:{U+7}], v{U+8}","s_waitcnt lgkmcnt(1)")
    a(f"v_add_u32 v{vDEG}, v{vDEG}, v{U+1}",f"v_add_u32 v{U+1}, 3, v{U+1}",f"v_lshrrev_b32 v{U+1}, 2, v{U+1}",f"v_mov_b32 v{U+2}, v{U+1}")
    dpp_scan(a,"v_add_u32",[U+2])
    a("s_waitcnt lgkmcnt(0)",f"v_readlane_b32 s86, v{U+2}, 24",f"v_readlane_b32 s87, v{U+2}, 63",f"v_sub_u32 v{U+2}, v{U+2}, v{U+1}")
    a("s_sub_u32 s87, s87, s86","s_add_u32 s87, s87, 7","s_lshr_b32 s87, s87, 3",
      "s_add_u32 s88, s86, 7","s_lshr_b32 s88, s88, 3",
      "s_add_u32 s89, s88, 3","s_lshl_b32 s90, s89, 3","s_sub_u32 s90, s90, s86")
    a(f"v_cmp_lt_u32 vcc, 24, v1",f"v_mov_b32 v{U+1}, s90","s_nop 0",f"v_cndmask_b32 v{U+1}, 0, v{U+1}, vcc",f"v_add_lshl_u32 v{U+2}, v{U+2}, v{U+1}, 2")
    for k in range(4): a(f"v_lshlrev_b32 v{AD+k}, 2, v{LD+k}",f"ds_bpermute_b32 v{AD+k}, v{AD+k}, v{U+2}")
    a(f"v_add_f32 v{U+4}, v{U+4}, v{U+5}",f"v_add_f32 v{U+4}, v{U+4}, v{U+6}","s_cmp_eq_u32 s25, 0","s_cselect_b32 s46, s88, s87","s_cselect_b32 s91, 0, s89",
      f"v_readfirstlane_b32 s92, v{U+4}",f"v_readfirstlane_b32 s47, v{U+7}")
    a(f"v_mov_b32 v{U+8}, 0x3f80",f"v_mov_b32 v{U+9}, 0",f"v_mov_b32 v{U+10}, {LREC}",f"v_mov_b32 v{U+11}, {LSRC}")
    a("s_cmp_ge_u32 s24, 2","s_cbranch_scc1 K2_NOPS")
    a("s_cmp_eq_u32 s24, 0","s_cselect_b32 s93, s88, s87","s_cselect_b32 s94, 0, s89","s_add_u32 s93, s93, 1",
      f"v_lshrrev_b32 v{U+12}, 5, v1",f"v_add_u32 v{U+12}, s93, v{U+12}",f"v_and_b32 v{U+12}, 1, v{U+12}",
      f"v_and_b32 v{U+13}, 3, v1",f"v_bfe_u32 v{U+14}, v1, 2, 3",
      f"v_lshl_add_u32 v{U+12}, v{U+12}, 2, v{U+13}",f"v_lshl_add_u32 v{U+12}, v{U+12}, 3, v{U+14}",f"v_lshlrev_b32 v{U+12}, 9, v{U+12}",
      f"v_mul_u32_u24 v{U+13}, {DPAD}, v{U+13}",f"v_lshl_add_u32 v{U+13}, v{U+14}, 7, v{U+13}",f"v_sub_u32 v{U+12}, v{U+12}, v{U+13}",
      "s_lshl_b32 s95, s24, 15",f"s_add_u32 s95, s95, {W2ROW*512+BIAS}",f"v_add_u32 v{U+12}, s95, v{U+12}",
      "s_add_u32 s93, s93, s94","s_lshl_b32 s93, s93, 7",f"s_add_u32 s93, s93, {LSRC}",f"v_lshl_add_u32 v{U+13}, v1, 2, s93",f"ds_write_b32 v{U+13}, v{U+12}")
    a("K2_NOPS:")
    a("s_waitcnt lgkmcnt(0)")
    for k in range(4):
        sl=AD+k
        a(f"v_add_u32 v{sl}, v{sl}, v{RN+k}",
          f"v_and_b32 v{U+12}, 0x3fff, v{RK+4*k+2}",f"v_lshlrev_b32 v{U+12}, 9, v{U+12}",
          f"v_bfe_u32 v{U+13}, v{sl}, 2, 3",f"v_and_b32 v{U+14}, 3, v{sl}",f"v_mul_u32_u24 v{U+15}, {DPAD}, v{U+14}",f"v_lshl_add_u32 v{U+15}, v{U+13}, 7, v{U+15}",
          f"v_sub_u32 v{U+12}, v{U+12}, v{U+15}",f"v_add_u32 v{U+12}, {BIAS}, v{U+12}",
          f"v_and_b32 v{U+13}, 3, v{U+13}",f"v_lshlrev_b32 v{U+13}, 4, v{U+13}",f"v_lshlrev_b64 v[{RK+4*k+2}:{RK+4*k+3}], v{U+13}, v[{U+8}:{U+9}]",
          f"v_lshl_add_u32 v{U+13}, v{sl}, 4, v{U+10}",f"v_lshl_add_u32 v{U+15}, v{sl}, 2, v{U+11}",
          f"v_cmp_eq_u32 vcc, 0, v{U+14}",f"v_mul_u32_u24 v{LD+k}, 192, v{LD+k}",f"v_add_u32 v{sl}, {LCH}, v{sl}",
          f"s_mov_b64 exec, s[{72+2*k}:{73+2*k}]",
          f"ds_write_b128 v{U+13}, v[{RK+4*k}:{RK+4*k+3}]",f"ds_write_b32 v{U+15}, v{U+12}",
          "s_and_b64 exec, exec, vcc",f"ds_write_b32 v{sl}, v{LD+k}","s_mov_b64 exec, -1")
    a(f"s_lshl_b32 s93, s91, 9",f"s_add_u32 s93, s93, {LREC}",f"v_add_u32 v{U}, s93, v2",f"v_mov_b32 v{U+1}, {LZ}",f"v_cndmask_b32 v{r.aREC}, v{U+1}, v{U}, s[42:43]")
    a(f"s_lshl_b32 s93, s91, 7",f"s_add_u32 s93, s93, {LSRC}",f"v_lshrrev_b32 v{U}, 3, v1",f"v_lshl_add_u32 v{r.aSRC}, v{U}, 4, s93")
    a(f"s_lshl_b32 s93, s91, 5",f"s_add_u32 s93, s93, {LCH}",f"v_bfe_u32 v{U}, v1, 2, 2",f"v_lshrrev_b32 v{U+1}, 5, v1",f"v_lshl_add_u32 v{U}, v{U+1}, 2, v{U}",f"v_lshl_add_u32 v{r.aCH}, v{U}, 2, s93")
    for i in range(4): a(f"v_mov_b32 v{r.OH+i}, 0",f"v_mov_b32 v{r.H[0]+i}, 0",f"v_mov_b32 v{r.H[1]+i}, 0")
    a("s_waitcnt lgkmcnt(0)","s_barrier")
    stamp(a,11)
    a(f"ds_read_b128 {v(r.DI,4)}, {v(r.aSRC)}",f"ds_read_b128 {v(r.E,4)}, {v(r.aSRC)} offset:128",f"ds_read_b32 {v(r.chv)}, {v(r.aCH)}","s_mov_b32 m0, s44","s_waitcnt lgkmcnt(2)")
    for j in range(4): a(f"buffer_load_dwordx4 {v(r.DI+j)}, s[48:51], 0 offen offset:{DPAD*j} lds")
    a("s_mov_b32 m0, s45","s_waitcnt lgkmcnt(1)")
    for j in range(4): a(f"buffer_load_dwordx4 {v(r.E+j)}, s[48:51], 0 offen offset:{DPAD*j} lds")
    a("s_waitcnt lgkmcnt(0)",f"v_add_u32 {v(r.aQ[0])}, {v(r.chv)}, {v(r.cQ)}",
      f"ds_read_b128 {v(r.AX,4)}, {v(r.aREC)}",f"ds_read_b64_tr_b16 {v(r.BX[0]+2,2)}, {v(r.aQ[0])}",f"ds_read_b64_tr_b16 {v(r.BX[1]+2,2)}, {v(r.aQ[0])} offset:64",
      f"ds_read_b128 {v(r.DI,4)}, {v(r.aSRC)} offset:256",f"ds_read_b32 {v(r.chv)}, {v(r.aCH)} offset:32","s_waitcnt vmcnt(4)")
    for q in range(4): a(f"ds_read_b128 {v(r.AF[q],4)}, {v(r.aA)} offset:{32*q}")
    a("s_mov_b32 m0, s44","s_waitcnt lgkmcnt(0)")
    a(f"{MF} {v(r.Y[0],16)}, {v(r.AF[0],4)}, {v(r.BS[0],4)}, 0",f"{MF} {v(r.Y[0],16)}, {v(r.AF[1],4)}, {v(r.BS[1],4)}, {v(r.Y[0],16)}",f"{MF} {v(r.Y[0],16)}, {v(r.AX,4)}, {v(r.BX[0],4)}, {v(r.Y[0],16)}")
    for j in range(4): a(f"buffer_load_dwordx4 {v(r.DI+j)}, s[48:51], 0 offen offset:{DPAD*j} lds")
    stamp(a,12)
    a("s_cmp_eq_u32 s46, 0","s_cbranch_scc1 K2_DONE")
    a("s_nop 4",f"s_cmp_le_u32 s92, {f32(30.0)}","s_cbranch_scc0 K2_LOOP_S")
    for nm,fast in (("F",True),("S",False)):
        if nm=="F": a(".p2align 6")
        a(f"K2_LOOP_{nm}:")
        a(tile(r,0,fast))
        a("s_sub_u32 s46, s46, 1","s_cmp_eq_u32 s46, 0","s_cbranch_scc1 K2_EXITA")
        a(tile(r,1,fast))
        a("s_sub_u32 s46, s46, 1","s_cmp_lg_u32 s46, 0",f"s_cbranch_scc1 K2_LOOP_{nm}")
        a("s_branch K2_EXITB")
    a("K2_EXITA:",f"v_mov_b32 v{r.OH+2}, 0",f"v_mov_b32 v{r.OH+3}, 0","s_nop 1",f"{MF} {v(r.S[0],16)}, {v(r.H[0],4)}, {v(r.OH,4)}, {v(r.S[0],16)}")
    a("K2_EXITB:","s_nop 1",f"{MF} {v(r.S[1],16)}, {v(r.H[1],4)}, {v(r.OH,4)}, {v(r.S[1],16)}")
    a("K2_DONE:","s_setprio 0","s_add_u32 s29, s29, 1","s_add_u32 s31, s31, 256","s_cmp_lt_u32 s29, s47","s_waitcnt vmcnt(0) lgkmcnt(0)","s_cbranch_scc0 K2_EPI")
    a("s_nop 7","s_barrier","s_branch K2_PASS")
    a("K2_EPI:")
    stamp(a,13)
    a("v_and_b32 v3, 31, v1","s_lshl_b32 s86, s26, 6","v_lshlrev_b32 v2, 1, v3",f"buffer_load_ushort v{B1R}, v2, s[64:67], s86 offen")
    a(f"s_mov_b32 s86, {f32(-math.log(2))}",f"s_mov_b32 s87, {f32(-math.log(2))}")
    a(f"v_cvt_f32_u32 v{T}, v{vDEG}",f"v_cmp_lt_u32 vcc, 24, v1",f"v_mov_b32 v{T+1}, 7",f"v_mov_b32 v{T+2}, {LDEG}",f"v_cndmask_b32 v{T+1}, 0, v{T+1}, vcc",f"v_add_u32 v{T+1}, v{T+1}, v1",f"v_min_u32 v{T+1}, 63, v{T+1}",f"v_lshl_add_u32 v{T+1}, v{T+1}, 2, v{T+2}",f"ds_write_b32 v{T+1}, v{T}")
    a(f"v_lshrrev_b32 v{T+3}, 5, v1",f"s_lshl_b32 s88, s25, 5",f"v_add_u32 v{T+4}, s88, v3",f"v_mul_u32_u24 v{T+4}, 528, v{T+4}",f"v_add_u32 v{T+4}, {LREC}, v{T+4}",
      f"s_lshl_b32 s88, s26, 7",f"v_lshl_add_u32 v{T+5}, v{T+3}, 5, s88",f"v_add_u32 v{T+5}, v{T+5}, v{T+4}",
      f"v_lshl_add_u32 v{T+4}, v{T+3}, 4, v{T+4}")
    for i in range(16): a(f"v_pk_mul_f32 v[{r.S[0]+2*i}:{r.S[0]+2*i+1}], v[{r.S[0]+2*i}:{r.S[0]+2*i+1}], s[86:87]")
    for i in range(16): a(f"v_cvt_pk_bf16_f32 v{r.Y[0]+i}, v{r.S[0]+2*i}, v{r.S[0]+2*i+1}")
    a("s_barrier")
    for q in range(4): a(f"ds_write_b128 v{T+5}, v[{r.Y[0]+4*q}:{r.Y[0]+4*q+3}] offset:{64*(q>>1)+16*(q&1)}")
    a(f"s_mul_i32 s88, s26, {4*SLOT}",f"v_lshl_add_u32 v{T+6}, v1, 4, s88")
    a(f"s_lshl_b32 s88, s25, 7",f"s_add_u32 s88, s88, {LDEG}",f"v_lshl_add_u32 v{T+7}, v{T+3}, 4, s88")
    a("s_mul_i32 s88, s25, 25","s_add_u32 s88, s88, s27","s_lshl_b32 s88, s88, 8","s_add_u32 s68, s20, s88","s_addc_u32 s69, s21, 0","s_and_b32 s69, s69, 0xffff",
      "s_sub_u32 s88, s28, 25","s_cmp_eq_u32 s25, 0","s_cselect_b32 s88, 25, s88","s_lshl_b32 s70, s88, 8","s_mov_b32 s71, 0x20000","s_movk_i32 s89, 0x1000")
    a(f"s_lshl_b32 s88, s26, 6",f"v_lshl_add_u32 v{T+8}, v{T+3}, 10, s88",f"v_add_u32 v{T+8}, v{T+8}, v2")
    for s in range(16): a(f"ds_read_b128 v[{QB+4*s}:{QB+4*s+3}], v{T+6} offset:{(s>>3)*2*SLOT+((s>>2)&1)*SLOT+(s&3)*DPAD}")
    a("s_waitcnt vmcnt(0) lgkmcnt(0)",f"v_lshlrev_b32 v{B1R}, 16, v{B1R}","s_barrier")
    stamp(a,14)
    for i in range(4): a(f"ds_read_b128 v[{r.Y[1]+4*i}:{r.Y[1]+4*i+3}], v{T+7} offset:{32*i}")
    GA=r.S[0]
    fr=[r.S[0]+4*i for i in range(8)]+[r.Y[0]+4*i for i in range(4)]+[r.AF[i] for i in range(4)]
    for s in range(11): a(f"ds_read_b128 v[{fr[s]}:{fr[s]+3}], v{T+4} offset:{32*s}")
    a("s_waitcnt lgkmcnt(11)")
    for i in range(16): a(f"v_mul_f32 v{r.Y[1]+i}, v{r.Y[1]+i}, v{B1R}")
    for s in range(11,16): a(f"ds_read_b128 v[{fr[s]}:{fr[s]+3}], v{T+4} offset:{32*s}")
    for s in range(16):
        a(f"s_waitcnt lgkmcnt({15-s})",f"{MF} {v(r.Y[1],16)}, v[{fr[s]}:{fr[s]+3}], v[{QB+4*s}:{QB+4*s+3}], {v(r.Y[1],16)}")
    a("s_nop 11")
    for m in range(8):
        i,j=(2*m)>>2,(2*m)&3
        a(f"v_cvt_pk_bf16_f32 v{r.S[0]+m}, v{r.Y[1]+2*m}, v{r.Y[1]+2*m+1}")
        so="0" if i<2 else "s89"; off=((8*i+j)*256)&4095
        a(f"buffer_store_short v{r.S[0]+m}, v{T+8}, s[68:71], {so} offen offset:{off}",f"buffer_store_short_d16_hi v{r.S[0]+m}, v{T+8}, s[68:71], {so} offen offset:{off+256}")
    stamp(a,15)
    stamp_flush(a,22,1,24,list(range(3,17)))
    a("K2_END:","s_endpgm")
    return a.text(), 256, (102 if STAMP else 96)
HEADER=open('standalone__edge_featured_mpnn_mpnn__graph.s.ref').read().split('; Override')[0]
def build(fn):
    t1,v1,s1=gen_k1(); t2,v2,s2=gen_k2()
    for nm,t in (('k1',t1),('k2',t2)):
        h=hazard.check(t); print(nm, "\n".join(h) or "no hazards")
    out=HEADER+f"; @launch kernel=mpnn_k1_kernel grid=({K1_GRID},1,1) block=(512,1,1) lds={K1_LDS}\n; @launch kernel=mpnn_k2_kernel grid=(256,1,1) block=(512,1,1) lds={K2_LDS}\n"
    out+='.amdgcn_target "amdgcn-amd-amdhsa--gfx950"\n.text\n'
    for nm,t in (('mpnn_k1_kernel',t1),('mpnn_k2_kernel',t2)):
        out+=f".globl {nm}\n.p2align 8\n.type {nm},@function\n"+t
    out+=kd('mpnn_k1_kernel',v1,s1)+kd('mpnn_k2_kernel',v2,s2)
    open(fn,'w').write(out)
    print("LDS k2",K2_LDS)
if __name__=='__main__':
    if len(sys.argv)>2 and 'stamp' in sys.argv[2]: STAMP=True
    build(sys.argv[1] if len(sys.argv)>1 else 'standalone__edge_featured_mpnn_mpnn__graph.s')
```

```python
import sys, struct, math
from mainloop import *
import hazard
def f32(x): return "0x%08x" % struct.unpack('<I',struct.pack('<f',x))[0]
LOG2E=math.log2(math.e)
N=12500; E=400000
NCH=250; CH=1600
NPW=196
K1_GRID=NCH+NPW+2
BIAS=4096
WS_P=BIAS; ZROW=12500; W2ROW=12504
WS_R=8<<20; WS_O=14<<20; WS_W1=15<<20; WS_PM=(15<<20)+(1<<17); WS_C=WS_PM+8192; WS_SIZE=16<<20
BM=21475; SM=399997; SA=8191
class A:
    def __init__(s): s.l=[]
    def __call__(s,*xs):
        for x in xs:
            if isinstance(x,(list,tuple)): s(*x); continue
            for y in x.split('\n'):
                y=y.strip()
                if y: s.l.append(y if y.endswith(':') else '    '+y)
    def text(s): return "\n".join(s.l)+"\n"
def srd(a,d,lo,hi,size,off=None,w3=0x20000,stride=0):
    if off is None:
        a(f"s_mov_b32 s{d}, s{lo}"); a(f"s_and_b32 s{d+1}, s{hi}, 0xffff")
    else:
        a(f"s_add_u32 s{d}, s{lo}, {off}"); a(f"s_addc_u32 s{d+1}, s{hi}, 0"); a(f"s_and_b32 s{d+1}, s{d+1}, 0xffff")
    if stride: a(f"s_or_b32 s{d+1}, s{d+1}, {stride<<16}")
    a(f"s_mov_b32 s{d+2}, {size}"); a(f"s_mov_b32 s{d+3}, {hex(w3)}")
def dpp_scan(a, op, regs_, zero_fill=True):
    steps=["row_shr:1 row_mask:0xf bank_mask:0xf bound_ctrl:0","row_shr:2 row_mask:0xf bank_mask:0xf bound_ctrl:0","row_shr:4 row_mask:0xf bank_mask:0xf bound_ctrl:0","row_shr:8 row_mask:0xf bank_mask:0xf bound_ctrl:0",
           "row_bcast:15 row_mask:0xa bank_mask:0xf","row_bcast:31 row_mask:0xc bank_mask:0xf"]
    for st in steps:
        if len(regs_)<3: a(f"s_nop {2-len(regs_)}") if len(regs_)<2 else a("s_nop 0")
        for r_ in regs_: a(f"{op}_dpp v{r_}, v{r_}, v{r_} {st}")
def kd(name, vgpr, sgpr):
    return f""".section .rodata,"a"
.p2align 6
.amdhsa_kernel {name}
  .amdhsa_next_free_vgpr {vgpr}
  .amdhsa_next_free_sgpr {sgpr}
  .amdhsa_accum_offset {(vgpr+3)//4*4}
  .amdhsa_group_segment_fixed_size 0
  .amdhsa_kernarg_size 88
  .amdhsa_user_sgpr_count 2
  .amdhsa_user_sgpr_kernarg_segment_ptr 1
  .amdhsa_system_sgpr_workgroup_id_x 1
.end_amdhsa_kernel
"""
STAMP=False
STF=''
NOST=False
FINE=False
NOREC=False
WS_ST=24<<20
def stamp(a, sreg):
    if not STAMP: return
    a("s_memrealtime s[100:101]","s_waitcnt lgkmcnt(0)",f"s_mov_b32 s{sreg}, s100")
def stamp_flush(a, wslo, kern, sW, sregs):
    if not STAMP: return
    a("s_waitcnt vmcnt(0)")
    stamp(a, sregs[-1])
    a(f"s_add_u32 s96, s{wslo}, {WS_ST}",f"s_addc_u32 s97, s{wslo+1}, 0","s_and_b32 s97, s97, 0xffff","s_mov_b32 s98, 0x800000","s_mov_b32 s99, 0x20000")
    a(f"s_add_u32 s100, s2, {kern*512}","s_lshl_b32 s100, s100, 3",f"s_add_u32 s100, s100, s{sW}","s_lshl_b32 s100, s100, 6","s_mov_b64 exec, 1","v_mov_b32 v3, 0")
    for q,sr in enumerate(sregs): a(f"v_mov_b32 v2, s{sr}",f"buffer_store_dword v2, v3, s[96:99], s100 offen offset:{4*q}")
K1_LDS=81920
def stage_w(a, sW, srdq):
    a("v_lshrrev_b32 v2, 5, v1","v_and_b32 v3, 31, v1","v_lshlrev_b32 v4, 2, v2","v_xor_b32 v3, v3, v4","v_lshlrev_b32 v3, 4, v3","v_lshl_add_u32 v3, v2, 9, v3","v_xor_b32 v4, 0x80, v3")
    a(f"s_lshl_b32 s60, s{sW}, 13","s_add_u32 s61, s60, 4096","s_mov_b32 m0, s60","s_nop 0")
    for q in range(8):
        if q==4: a("s_mov_b32 m0, s61","s_nop 0")
        a(f"buffer_load_dwordx4 v{3+(q&1)}, s[{srdq}:{srdq+3}], s{60+(q>>2)} offen offset:{1024*(q&3)} lds")
def bfrag_addr(a, sW):
    a("v_bfe_u32 v2, v1, 2, 2",
      "v_lshrrev_b32 v3, 5, v1",
      "v_lshl_add_u32 v3, v3, 3, v2",
      "v_bfe_u32 v4, v1, 4, 1","v_bfe_u32 v5, v1, 1, 1","v_lshl_add_u32 v4, v4, 1, v5",
      f"s_and_b32 s62, s{sW}, 3","s_lshl_b32 s62, s62, 3","v_add_u32 v4, s62, v4",
      "v_lshlrev_b32 v2, 2, v2","v_xor_b32 v4, v4, v2",
      "v_lshlrev_b32 v4, 4, v4","v_lshl_add_u32 v4, v3, 9, v4",
      "v_and_b32 v2, 1, v1","v_lshl_add_u32 v5, v2, 3, v4","v_xor_b32 v6, 64, v5")
def gen_k1():
    a=A()
    a("mpnn_k1_kernel:")
    a(f"s_cmp_ge_u32 s2, {K1_GRID}","s_cbranch_scc1 K1_END")
    stamp(a,72)
    a("s_load_dwordx16 s[4:19], s[0:1], 0","s_load_dwordx2 s[20:21], s[0:1], 80")
    a("v_and_b32 v1, 63, v0","v_lshrrev_b32 v2, 6, v0","s_nop 0","v_readfirstlane_b32 s22, v2")
    a("s_waitcnt lgkmcnt(0)")
    a(f"s_cmp_lt_u32 s2, {NPW+2}","s_cbranch_scc1 K1_GEMM",f"s_sub_u32 s2, s2, {NPW+2}")
    a(f"s_mul_i32 s23, s2, {CH*4}")
    for d,(lo,hi) in ((24,(10,11)),(28,(8,9))):
        a(f"s_add_u32 s{d}, s{lo}, s23",f"s_addc_u32 s{d+1}, s{hi}, 0",f"s_and_b32 s{d+1}, s{d+1}, 0xffff",f"s_mov_b32 s{d+2}, {CH*4}",f"s_mov_b32 s{d+3}, 0x20000")
    a("s_lshl_b32 s23, s23, 1","s_add_u32 s32, s6, s23","s_addc_u32 s33, s7, 0","s_and_b32 s33, s33, 0xffff",f"s_mov_b32 s34, {CH*8}","s_mov_b32 s35, 0x20000")
    a(f"s_mul_i32 s23, s2, {CH*12}",f"s_add_u32 s23, s23, {WS_R}","s_add_u32 s36, s20, s23","s_addc_u32 s37, s21, 0","s_and_b32 s37, s37, 0xffff",f"s_mov_b32 s38, {0 if NOREC else CH*12}","s_mov_b32 s39, 0x20000")
    a(f"s_lshl_b32 s23, s2, 10",f"s_add_u32 s23, s23, {WS_O}","s_add_u32 s40, s20, s23","s_addc_u32 s41, s21, 0","s_and_b32 s41, s41, 0xffff","s_mov_b32 s42, 1024","s_mov_b32 s43, 0x20000")
    a("v_lshlrev_b32 v2, 4, v0","v_lshlrev_b32 v3, 5, v0")
    a("buffer_load_dwordx4 v[8:11], v2, s[24:27], 0 offen","buffer_load_dwordx4 v[12:15], v2, s[28:31], 0 offen",
      "buffer_load_dwordx4 v[16:19], v3, s[32:35], 0 offen","buffer_load_dwordx4 v[20:23], v3, s[32:35], 0 offen offset:16")
    a("v_and_b32 v4, 255, v0","v_lshlrev_b32 v4, 2, v4","v_mov_b32 v5, 0","ds_write_b32 v4, v5","v_mov_b32 v6, 1")
    a(f"v_cmp_gt_u32 s[44:45], {CH//4}, v0" if False else f"s_movk_i32 s46, {CH//4}", "v_cmp_gt_u32 s[44:45], s46, v0")
    a(f"s_mov_b32 s47, {BM}",f"s_mov_b32 s48, {SM}",f"v_mov_b32 v7, {SA}")
    a("s_waitcnt lgkmcnt(0)","s_barrier")
    a("s_mov_b64 exec, s[44:45]","s_waitcnt vmcnt(3)")
    stamp(a,73)
    for j in range(4): a(f"v_mul_u32_u24 v{24+j}, s47, v{8+j}")
    for j in range(4): a(f"v_lshrrev_b32 v{24+j}, 20, v{24+j}")
    for j in range(4): a(f"v_lshlrev_b32 v{28+j}, 2, v{24+j}")
    for j in range(4): a(f"ds_add_rtn_u32 v{32+j}, v{28+j}, v6")
    for j in range(4): a(f"v_mad_u32_u24 v{24+j}, v{24+j}, s48, v7")
    for j in range(4): a(f"v_lshrrev_b32 v{24+j}, 13, v{24+j}")
    for j in range(4): a(f"v_sub_u32 v{24+j}, v{8+j}, v{24+j}")
    a("s_waitcnt vmcnt(2)")
    for j in range(4): a(f"v_lshl_or_b32 v{24+j}, v{24+j}, 16, v{12+j}")
    a("s_mov_b64 exec, -1","v_lshlrev_b32 v4, 4, v1","s_waitcnt lgkmcnt(0)","s_barrier")
    stamp(a,74)
    a("ds_read_b128 v[36:39], v4","s_waitcnt lgkmcnt(0)")
    a("v_add_u32 v41, v36, v37","v_add_u32 v42, v41, v38","v_add_u32 v43, v42, v39","v_mov_b32 v44, v43")
    dpp_scan(a,"v_add_u32",[44])
    a("v_sub_u32 v44, v44, v43","v_add_u32 v45, v44, v36","v_add_u32 v46, v44, v41","v_add_u32 v47, v44, v42")
    a("ds_write_b128 v4, v[44:47] offset:1024")
    a("s_cmp_lg_u32 s22, 7","s_cbranch_scc1 K1_P1")
    for j in range(4): a(f"v_lshl_or_b32 v{48+j}, v{36+j}, 16, v{44+j}")
    a("buffer_store_dwordx4 v[48:51], v4, s[40:43], 0 offen")
    a("K1_P1:")
    a("s_mov_b64 exec, s[44:45]","s_waitcnt lgkmcnt(0)")
    for j in range(4): a(f"ds_read_b32 v{36+j}, v{28+j} offset:1024")
    a("v_mov_b32 v7, 2048","s_waitcnt lgkmcnt(0)")
    for j in range(4): a(f"v_add_u32 v{36+j}, v{36+j}, v{32+j}")
    for j in range(4): a(f"v_mad_u32_u24 v{36+j}, v{36+j}, 12, v7")
    a("s_waitcnt vmcnt(0)")
    for j in range(4):
        a(f"ds_write2_b32 v{36+j}, v{16+2*j}, v{17+2*j} offset0:0 offset1:1",f"ds_write_b32 v{36+j}, v{24+j} offset:8")
    a("s_mov_b64 exec, -1","s_waitcnt lgkmcnt(0)","s_barrier")
    stamp(a,75)
    for k in range(3): a(f"ds_read_b128 v[{8+4*k}:{11+4*k}], v2 offset:{2048+8192*k}")
    a("s_movk_i32 s46, 0x2000","s_movk_i32 s47, 0x4000")
    for k in range(3): a(f"s_waitcnt lgkmcnt({2-k})", f"buffer_store_dwordx4 v[{8+4*k}:{11+4*k}], v2, s[36:39], {('0','s46','s47')[k]} offen {STF}")
    if STAMP: a(f"s_add_u32 s2, s2, {NPW+2}")
    stamp_flush(a,20,0,22,[72,73,74,75,76])
    a("s_endpgm")
    a("K1_GEMM:")
    srd(a,28,20,21,WS_SIZE)
    a(f"s_cmp_lt_u32 s2, 2","s_cbranch_scc1 K1_PREP")
    srd(a,24,12,13,65536)
    srd(a,32,4,5,N*256)
    srd(a,36,20,21,(0 if NOST else N*512),off=WS_P)
    stage_w(a,22,24)
    a(f"s_sub_u32 s23, s2, 2")
    a("v_lshrrev_b32 v2, 4, v1","s_and_b32 s62, s22, 1","s_lshl_b32 s62, s62, 3","v_add_u32 v3, s62, v2","v_and_b32 v4, 15, v1","v_xor_b32 v3, v3, v4","v_lshlrev_b32 v3, 4, v3","v_lshl_add_u32 v3, v2, 8, v3","v_xor_b32 v4, 64, v3")
    a("s_lshl_b32 s60, s22, 11","s_add_u32 s61, s60, 65536","s_lshl_b32 s62, s23, 14","s_add_u32 s60, s60, s62","s_mov_b32 m0, s61","s_nop 0")
    a("buffer_load_dwordx4 v3, s[32:35], s60 offen lds","buffer_load_dwordx4 v4, s[32:35], s60 offen offset:1024 lds")
    bfrag_addr(a,22)
    a("v_and_b32 v2, 31, v1","v_lshrrev_b32 v3, 5, v1","v_and_b32 v4, 15, v1","v_xor_b32 v3, v3, v4","v_lshlrev_b32 v3, 4, v3","v_lshl_add_u32 v3, v2, 8, v3",
      "s_lshr_b32 s62, s22, 2","s_lshl_b32 s63, s62, 13","s_add_u32 s63, s63, 65536","v_add_u32 v7, s63, v3")
    for s in range(1,8): a(f"v_xor_b32 v{8+s}, {32*s}, v7")
    a("v_mov_b32 v8, v7")
    a("v_lshrrev_b32 v2, 5, v1","v_and_b32 v3, 31, v1","v_lshlrev_b32 v3, 2, v3","v_lshl_add_u32 v16, v2, 11, v3",
      "s_and_b32 s63, s22, 3","s_lshl_b32 s63, s63, 7","s_lshl_b32 s64, s23, 15","s_lshl_b32 s62, s62, 14","s_add_u32 s64, s64, s62","s_add_u32 s64, s64, s63",
      "s_add_u32 s65, s64, 4096","s_add_u32 s66, s64, 8192","s_add_u32 s67, s64, 12288")
    a(f"s_mov_b32 s70, {f32(-LOG2E)}",f"s_mov_b32 s71, {f32(-LOG2E)}")
    a("s_waitcnt vmcnt(0)","s_barrier")
    stamp(a,73)
    AFR=20; BFR=52; ACC=84
    for s in range(8):
        a(f"ds_read_b128 v[{AFR+4*s}:{AFR+4*s+3}], v{8+s}")
        for tt in range(2):
            for u in range(2):
                b=BFR+8*(s%4)+4*tt+2*u
                a(f"ds_read_b64_tr_b16 v[{b}:{b+1}], v{5+tt} offset:{(16*s+4*u)*512}")
        if s>=2:
            q=s-2
            a("s_waitcnt lgkmcnt(10)")
            for tt in range(2): a(f"{MF} v[{ACC+16*tt}:{ACC+16*tt+15}], v[{AFR+4*q}:{AFR+4*q+3}], v[{BFR+8*(q%4)+4*tt}:{BFR+8*(q%4)+4*tt+3}], "+("0" if q==0 else f"v[{ACC+16*tt}:{ACC+16*tt+15}]"))
    for q in (6,7):
        a(f"s_waitcnt lgkmcnt({5*(7-q)})")
        for tt in range(2): a(f"{MF} v[{ACC+16*tt}:{ACC+16*tt+15}], v[{AFR+4*q}:{AFR+4*q+3}], v[{BFR+8*(q%4)+4*tt}:{BFR+8*(q%4)+4*tt+3}], v[{ACC+16*tt}:{ACC+16*tt+15}]")
    a("v_mov_b32 v17, 0","s_nop 10")
    stamp(a,74)
    for i in range(16): a(f"v_pk_mul_f32 v[{ACC+2*i}:{ACC+2*i+1}], v[{ACC+2*i}:{ACC+2*i+1}], s[70:71]")
    for i in range(16):
        a(f"v_cvt_pk_bf16_f32 v{20+i}, v{ACC+i}, v{ACC+16+i}", f"v_max3_f32 v17, |v{ACC+i}|, |v{ACC+16+i}|, v17")
        a(f"buffer_store_dword v{20+i}, v16, s[36:39], s{64+(i>>2)} offen offset:{512*(i&3)} {STF}")
    dpp_scan(a,"v_max_u32",[17])
    a("s_lshl_b32 s62, s23, 3","s_add_u32 s62, s62, s22","s_lshl_b32 s62, s62, 2",f"s_add_u32 s62, s62, {WS_PM}")
    a("v_mov_b32 v2, 0","s_mov_b32 exec_lo, 0","s_brev_b32 exec_hi, 1","buffer_store_dword v17, v2, s[28:31], s62 offen")
    stamp(a,75)
    stamp_flush(a,20,0,22,[72,73,74,75,76])
    a("s_endpgm")
    a("K1_PREP:")
    a(f"s_cmp_eq_u32 s2, 1","s_cbranch_scc1 K1_PREP2")
    srd(a,24,12,13,65536,off=65536)
    stage_w(a,22,24)
    bfrag_addr(a,22)
    a("s_lshr_b32 s62, s22, 2","s_lshl_b32 s63, s62, 6","v_xor_b32 v5, s63, v5")
    a("s_and_b32 s63, s22, 3","s_lshl_b32 s63, s63, 1","s_add_u32 s63, s63, s62","s_lshl_b32 s63, s63, 13",f"s_add_u32 s63, s63, {WS_W1}","s_add_u32 s64, s63, 4096")
    srd(a,32,12,13,260*512); srd(a,36,14,15,512)
    a("v_and_b32 v8, 255, v0","v_lshrrev_b32 v2, 6, v8","v_bfe_u32 v3, v8, 5, 1","v_lshlrev_b32 v2, 7, v2","v_lshl_add_u32 v2, v3, 5, v2","v_and_b32 v3, 1, v8","v_lshl_add_u32 v2, v3, 6, v2","v_bfe_u32 v3, v8, 1, 4","v_lshl_add_u32 v2, v3, 1, v2",f"s_mov_b32 s65, {256*512}")
    for k in range(4): a(f"buffer_load_ushort v{10+k}, v2, s[32:35], s65 offen offset:{512*k}")
    a("v_lshlrev_b32 v2, 1, v8","buffer_load_ushort v14, v2, s[36:39], 0 offen")
    a("v_lshlrev_b32 v7, 4, v1","s_waitcnt vmcnt(0)","s_barrier")
    for k in range(5): a(f"v_lshlrev_b32 v{10+k}, 16, v{10+k}",f"v_mul_f32 v{10+k}, {f32(-LOG2E)}, v{10+k}")
    a("v_cvt_pk_bf16_f32 v10, v10, v11","v_cvt_pk_bf16_f32 v11, v12, v13","v_lshlrev_b32 v2, 3, v8","v_lshlrev_b32 v3, 2, v8",f"s_mov_b32 s65, {WS_C}")
    a("buffer_store_dwordx2 v[10:11], v2, s[28:31], s65 offen","buffer_store_dword v14, v3, s[28:31], s65 offen offset:2048")
    for s in range(8):
        for u in range(2): a(f"ds_read_b64_tr_b16 v[{20+4*s+2*u}:{21+4*s+2*u}], v5 offset:{(16*s+4*u)*512}")
    a("s_waitcnt lgkmcnt(0)")
    for s in range(8): a(f"buffer_store_dwordx4 v[{20+4*s}:{23+4*s}], v7, s[28:31], s{63+(s>>2)} offen offset:{1024*(s&3)}")
    a("s_endpgm")
    a("K1_PREP2:")
    srd(a,24,16,17,65536)
    srd(a,32,12,13,260*512)
    a("v_lshlrev_b32 v7, 4, v1","s_lshl_b32 s60, s22, 13","s_add_u32 s61, s60, 4096","s_mov_b32 m0, s60","s_nop 0")
    for q in range(8):
        if q==4: a("s_mov_b32 m0, s61","s_nop 0")
        a(f"buffer_load_dwordx4 v7, s[24:27], s{60+(q>>2)} offen offset:{1024*(q&3)} lds")
    a("s_and_b32 s62, s22, 3","s_lshl_b32 s62, s62, 9",f"s_add_u32 s62, s62, {256*512}","v_lshlrev_b32 v2, 3, v1","buffer_load_dwordx2 v[8:9], v2, s[32:35], s62 offen")
    a("v_bfe_u32 v2, v1, 2, 1","v_lshrrev_b32 v3, 5, v1","v_lshlrev_b32 v3, 3, v3","v_lshl_add_u32 v2, v2, 5, v3","v_bfe_u32 v3, v1, 3, 1","v_add_u32 v2, v2, v3",
      "v_bfe_u32 v3, v1, 4, 1","v_and_b32 v4, 3, v1","v_lshlrev_b32 v4, 3, v4","v_lshl_add_u32 v3, v3, 5, v4","v_lshl_add_u32 v5, v2, 8, v3",
      "s_lshr_b32 s62, s22, 1","s_lshl_b32 s62, s62, 6","s_and_b32 s63, s22, 1","s_lshl_b32 s63, s63, 15","s_add_u32 s62, s62, s63","v_add_u32 v5, s62, v5")
    a("v_lshrrev_b32 v2, 3, v1","v_and_b32 v3, 7, v1","v_lshlrev_b32 v3, 4, v3","v_lshl_add_u32 v6, v2, 9, v3",
      "s_lshr_b32 s62, s22, 2","s_lshl_b32 s62, s62, 15","s_and_b32 s63, s22, 3","s_lshl_b32 s63, s63, 7","s_add_u32 s62, s62, s63",f"s_add_u32 s62, s62, {WS_P+W2ROW*512}")
    a("s_waitcnt vmcnt(0)","s_barrier")
    for s8 in range(8):
        for u in range(2):
            lam=64*(s8>>2)+16*((s8>>1)&1)+2*(s8&1)+4*u
            a(f"ds_read_b64_tr_b16 v[{20+4*s8+2*u}:{21+4*s8+2*u}], v5 offset:{lam*256}")
    a("v_lshlrev_b32 v10, 16, v8","v_and_b32 v11, 0xffff0000, v8","v_lshlrev_b32 v12, 16, v9","v_and_b32 v13, 0xffff0000, v9",
      "v_max3_f32 v10, |v10|, |v11|, |v12|","v_max_f32 v10, v10, |v13|" if False else "v_max3_f32 v10, v10, |v13|, |v13|")
    dpp_scan(a,"v_max_u32",[10])
    a(f"v_mul_f32 v10, {f32(LOG2E*1.01)}, v10")
    a("s_waitcnt lgkmcnt(0)")
    for s8 in range(8):
        a(f"buffer_store_dwordx4 v[{20+4*s8}:{23+4*s8}], v6, s[28:31], s62 offen","s_add_u32 s62, s62, 4096")
    a("s_cmp_ge_u32 s22, 4","s_cbranch_scc1 K1_END")
    a("v_mov_b32 v12, 0","v_mov_b32 v13, 0","v_lshlrev_b32 v2, 3, v1",f"s_mov_b32 s63, {WS_P+ZROW*512}","buffer_store_dwordx2 v[12:13], v2, s[28:31], s63 offen")
    a("s_lshl_b32 s62, s22, 2",f"s_add_u32 s62, s62, {WS_C+3072}","s_mov_b32 exec_lo, 0","s_brev_b32 exec_hi, 1","buffer_store_dword v10, v12, s[28:31], s62 offen")
    a("K1_END:","s_endpgm")
    return a.text(), 116, (102 if STAMP else 80)

NSLOT=2560
LCH=0; LSRC=NSLOT; LZ=LSRC+NSLOT*4; LCNT=LZ+16; LDEG=LZ+528; LB=LZ+1536
LREC=LZ+1600; LQI=LREC+NSLOT*16; LRING=LQI+4*50*192; K2_LDS=LRING+16*SLOT
LXT=LRING; LARR=LRING+16384
ZOFF=49*192
THR=30.0
def gen_k2():
    r=regs(); a=A()
    vENT=r.top; vDEG=r.top+1; vB2=r.top+2
    QB=160; QA=192; RK=r.N[0]; PMR=r.H[1]; WM=r.AX; WMP=WM; B1R=r.OH
    T=r.E; U=r.AF[0]; EP=[]
    a("mpnn_k2_kernel:")
    a("s_cmp_ge_u32 s2, 256","s_cbranch_scc1 K2_END")
    stamp(a,3)
    a("s_load_dwordx2 s[22:23], s[0:1], 80","s_load_dwordx16 s[4:19], s[0:1], 0","s_load_dwordx2 s[20:21], s[0:1], 64")
    a("s_and_b32 s84, s2, 7","s_lshl_b32 s84, s84, 5","s_lshr_b32 s2, s2, 3","s_or_b32 s2, s2, s84")
    a("v_lshrrev_b32 v2, 1, v0","s_lshl_b32 s84, s2, 2","v_lshl_add_u32 v3, v2, 10, s84")
    a("v_and_b32 v1, 63, v0","v_lshrrev_b32 v2, 6, v0",f"s_mov_b32 s38, {NCH*1024}","s_mov_b32 s39, 0x20000","v_readfirstlane_b32 s24, v2")
    a("s_waitcnt lgkmcnt(0)")
    a(f"s_add_u32 s36, s22, {WS_O}","s_addc_u32 s37, s23, 0","s_and_b32 s37, s37, 0xffff")
    a(f"buffer_load_dword v{vENT}, v3, s[36:39], 0 offen")
    a(f"s_mul_i32 s27, s2, {SM}",f"s_add_u32 s28, s27, {SM+SA}",f"s_add_u32 s27, s27, {SA}","s_lshr_b32 s27, s27, 13","s_lshr_b32 s28, s28, 13","s_sub_u32 s28, s28, s27")
    a("s_lshr_b32 s25, s24, 2","s_and_b32 s26, s24, 3","s_mov_b32 s29, 0","s_mov_b32 s31, 0")
    srd(a,32,22,23,WS_SIZE)
    srd(a,52,4,5,N*256)
    srd(a,64,18,19,256)
    a("s_lshl_b32 s86, s26, 7","s_add_u32 s48, s22, s86","s_addc_u32 s49, s23, 0","s_and_b32 s49, s49, 0xffff","s_or_b32 s49, s49, 0x100000","s_mov_b32 s50, -1","s_mov_b32 s51, 0x800000")
    a("s_mov_b32 s40, 1.0","s_mov_b32 s41, 1.0",f"s_mul_i32 s44, s24, {2*SLOT}",f"s_add_u32 s44, s44, {LRING}",f"s_add_u32 s45, s44, {SLOT}")
    a(f"v_mov_b32 v{vDEG}, 0")
    a("K2_PASS:")
    Z=U
    for i in range(4): a(f"v_mov_b32 v{Z+i}, 0")
    a(f"v_lshlrev_b32 v{T}, 4, v0",f"v_lshlrev_b32 v{T+1}, 2, v1",f"ds_write_b32 v{T+1}, v{Z} offset:{LCNT}")
    for k in range(5): a(f"ds_write_b128 v{T}, v[{Z}:{Z+3}] offset:{LREC+8192*k}")
    a(f"v_and_b32 v{T+1}, 7, v0",f"v_lshlrev_b32 v{T+1}, 7, v{T+1}",f"v_sub_u32 v{U+4}, {ZROW*512+BIAS}, v{T+1}")
    for j in range(1,4): a(f"v_subrev_u32 v{U+4+j}, {DPAD*j}, v{U+4}")
    a(f"ds_write_b128 v{T}, v[{U+4}:{U+7}] offset:{LSRC}")
    a(f"v_and_b32 v{T+1}, 127, v0",f"v_lshlrev_b32 v{T+2}, 4, v{T+1}",f"ds_write_b128 v{T+2}, v[{U+4}:{U+7}] offset:{LSRC+8192}")
    a(f"v_mov_b32 v{T+3}, {ZOFF}",f"v_lshlrev_b32 v{T+2}, 2, v0",f"ds_write_b32 v{T+2}, v{T+3} offset:{LCH}",
      f"v_lshlrev_b32 v{T+1}, 2, v{T+1}",f"ds_write_b32 v{T+1}, v{T+3} offset:{LCH+2048}")
    a(f"v_and_b32 v{T+1}, 1, v1",f"v_lshrrev_b32 v{T+4}, 1, v0",f"v_mul_u32_u24 v{T+4}, {CH}, v{T+4}",
      f"s_lshl_b32 s87, s24, 10",f"s_add_u32 s87, s87, {LARR}","s_lshl_b32 s88, s31, 2","s_sub_u32 s88, s87, s88","s_add_u32 s86, s31, 256",
      f"v_add_u32 v{T+10}, s31, v1",f"v_lshl_add_u32 v{T+14}, v1, 2, s87",f"v_sub_u32 v{T+15}, 1, v{T+1}")
    for k in range(1,4): a(f"v_add_u32 v{T+10+k}, {64*k}, v{T+10}")
    stamp(a,4)
    a("s_waitcnt vmcnt(0)")
    stamp(a,5)
    a(f"v_lshrrev_b32 v{T}, 16, v{vENT}",f"v_mul_u32_u24 v{T+2}, v{T}, v{T+15}",f"v_and_b32 v{T+5}, 0xffff, v{vENT}",f"v_add_u32 v{T+4}, v{T+4}, v{T+5}")
    dpp_scan(a,"v_add_u32",[T+2])
    a(f"v_sub_u32 v{T+3}, v{T+2}, v{T}",f"v_readlane_b32 s30, v{T+2}, 63",f"v_sub_u32 v{T+4}, v{T+4}, v{T+3}",
      f"v_max_u32 v{T+3}, s31, v{T+3}",f"v_add_u32 v{T+3}, v{T+3}, v{T+1}",f"v_min_u32 v{T+2}, s86, v{T+2}",
      f"v_lshl_add_u32 v{T+5}, v{T+3}, 2, s88",f"v_sub_u32 v{T+2}, v{T+2}, v{T+3}")
    a("K2_EXP:")
    for it in range(8): a(f"v_cmpx_lt_i32 vcc, {2*it}, v{T+2}",f"ds_write_b32 v{T+5}, v{T+4} offset:{8*it}")
    a(f"v_cmpx_lt_i32 vcc, 16, v{T+2}","s_cbranch_execz K2_EXPD",f"v_subrev_u32 v{T+2}, 16, v{T+2}",f"v_add_u32 v{T+5}, 64, v{T+5}","s_branch K2_EXP","K2_EXPD:","s_mov_b64 exec, -1")
    for k in range(4): a(f"ds_read_b32 v{T+6+k}, v{T+14} offset:{256*k}")
    a(f"v_bfrev_b32 v{T+4}, 2",f"s_mov_b32 s86, {WS_R}")
    for k in range(4): a(f"v_cmp_gt_u32 s[{72+2*k}:{73+2*k}], s30, v{T+10+k}")
    for k in range(4):
        a(f"s_waitcnt lgkmcnt({3-k})",f"v_add_u32 v{T+10+k}, v{T+10+k}, v{T+6+k}",f"v_mul_u32_u24 v{T+10+k}, 12, v{T+10+k}",f"v_cndmask_b32 v{T+10+k}, v{T+4}, v{T+10+k}, s[{72+2*k}:{73+2*k}]",
          f"buffer_load_dwordx3 v[{RK+4*k}:{RK+4*k+2}], v{T+10+k}, s[32:35], s86 offen")
    stamp(a,6)
    a("s_barrier")
    a("s_cmp_lg_u32 s29, 0","s_cbranch_scc1 K2_NOBULK")
    a("v_lshrrev_b32 v2, 4, v1","s_and_b32 s86, s24, 1","s_lshl_b32 s86, s86, 3","v_add_u32 v3, s86, v2",f"v_and_b32 v{T}, 15, v1",f"v_xor_b32 v3, v3, v{T}","v_lshlrev_b32 v3, 4, v3","v_lshl_add_u32 v3, v2, 8, v3","v_xor_b32 v2, 64, v3")
    a("s_lshl_b32 s86, s24, 11","s_lshl_b32 s87, s27, 8","s_add_u32 s87, s87, s86",f"s_add_u32 m0, s86, {LXT}","s_lshl_b32 s86, s24, 13")
    a("buffer_load_dwordx4 v3, s[52:55], s87 offen lds","buffer_load_dwordx4 v2, s[52:55], s87 offen offset:1024 lds")
    a("v_lshlrev_b32 v2, 4, v1",f"s_add_u32 s86, s86, {WS_W1}","s_add_u32 s87, s86, 4096")
    for s in range(8): a(f"buffer_load_dwordx4 v[{QB+4*s}:{QB+4*s+3}], v2, s[32:35], s{86+(s>>2)} offen offset:{1024*(s&3)}")
    a("v_and_b32 v3, 31, v1","v_lshlrev_b32 v2, 3, v3","s_lshl_b32 s86, s26, 9",f"s_add_u32 s86, s86, {WS_C}")
    for ct in range(2): a(f"buffer_load_dwordx2 v[{r.BX[ct]}:{r.BX[ct]+1}], v2, s[32:35], s86 offen offset:{256*ct}")
    a("v_lshlrev_b32 v2, 2, v3","s_lshl_b32 s86, s24, 7",f"s_add_u32 s86, s86, {WS_C+2048}",f"buffer_load_dword v{B1R}, v2, s[32:35], s86 offen")
    a("v_lshlrev_b32 v2, 1, v3","s_lshl_b32 s86, s26, 6",f"buffer_load_ushort v{vB2}, v2, s[64:67], s86 offen")
    a(f"s_mov_b32 s86, {WS_C+3072}",f"buffer_load_dwordx4 v[{WM}:{WM+3}], off, s[32:35], s86")
    a(f"v_min_u32 v2, {NPW*2-1}, v0","v_lshlrev_b32 v2, 4, v2",f"s_mov_b32 s86, {WS_PM}",f"buffer_load_dwordx4 v[{PMR}:{PMR+3}], v2, s[32:35], s86 offen")
    for i in range(4): a(f"v_mov_b32 v{Z+i}, 0")
    a(f"v_mov_b32 v{T+6}, 0x3f80")
    for rnd in range(2):
        if rnd==0: a(f"v_lshrrev_b32 v{T+1}, 2, v0")
        else: a(f"v_add_u32 v{T+1}, 128, v{T+7}",f"v_min_u32 v{T+1}, 199, v{T+1}")
        a(f"v_mov_b32 v{T+7}, v{T+1}",f"v_and_b32 v{T+2}, 3, v0",
          f"v_mul_u32_u24 v{T+3}, 1311, v{T+1}",f"v_lshrrev_b32 v{T+3}, 16, v{T+3}",f"v_mul_u32_u24 v{T+3}, 50, v{T+3}",f"v_sub_u32 v{T+3}, v{T+1}, v{T+3}",
          f"v_mul_u32_u24 v{T+1}, 192, v{T+1}",f"v_lshl_add_u32 v{T+1}, v{T+2}, 4, v{T+1}",
          f"ds_write_b128 v{T+1}, v[{Z}:{Z+3}] offset:{LQI+128}",
          f"v_subrev_u32 v{T+4}, 25, v{T+3}",f"v_min_u32 v{T+4}, v{T+4}, v{T+3}",
          f"v_lshlrev_b32 v{T+2}, 3, v{T+2}",f"v_sub_u32 v{T+4}, v{T+4}, v{T+2}",f"v_lshl_add_u32 v{T+1}, v{T+4}, 1, v{T+1}",
          f"v_cmpx_gt_u32 vcc, 8, v{T+4}",f"v_cmpx_ne_u32 vcc, 49, v{T+3}",
          f"ds_write_b16 v{T+1}, v{T+6} offset:{LQI+128}","s_mov_b64 exec, -1")
    a(f"v_bfe_u32 v{T}, v0, 3, 2",f"v_mul_u32_u24 v{T}, 9600, v{T}",f"v_and_b32 v{T+1}, 7, v0",f"v_lshl_add_u32 v{T}, v{T+1}, 4, v{T}",f"ds_write_b128 v{T}, v[{Z}:{Z+3}] offset:{LQI+ZOFF}")
    a(f"v_and_b32 v{T}, 3, v0",f"v_lshlrev_b32 v{T}, 9, v{T}",f"ds_write_b128 v{T}, v[{Z}:{Z+3}] offset:{LZ}")
    a(f"v_and_b32 v{T}, 31, v1",f"v_lshrrev_b32 v{T+1}, 5, v1",f"v_lshlrev_b32 v{T+1}, 3, v{T+1}",f"v_sub_u32 v{T}, v{T}, v{T+1}",
      f"v_and_b32 v{T+1}, 1, v1",f"v_lshlrev_b32 v{T+1}, 4, v{T+1}",f"v_lshlrev_b32 v{T+1}, v{T+1}, v{T+6}",f"v_ashrrev_i32 v{T}, 1, v{T}")
    for q in range(4):
        a(f"v_cmp_eq_u32 vcc, {q}, v{T}",f"v_cmp_eq_u32 s[84:85], {8+q}, v{T}","s_nop 0",f"v_cndmask_b32 v{r.BS[0]+q}, 0, v{T+1}, vcc",f"v_cndmask_b32 v{r.BS[1]+q}, 0, v{T+1}, s[84:85]")
    a(f"v_and_b32 v{T}, 1, v1",f"v_bfe_u32 v{T+1}, v1, 4, 1",f"v_lshl_or_b32 v{T}, v{T+1}, 1, v{T}",f"v_bfe_u32 v{T+1}, v1, 2, 1",f"v_lshl_or_b32 v{T}, v{T+1}, 2, v{T}",
      f"v_bfe_u32 v{T+2}, v1, 1, 1",f"v_bfe_u32 v{T+3}, v1, 3, 1",f"v_lshl_or_b32 v{T+2}, v{T+3}, 1, v{T+2}",
      f"v_mul_u32_u24 v{T+3}, {DPAD}, v{T+2}",f"v_lshl_add_u32 v{T+3}, v{T}, 7, v{T+3}",f"v_lshrrev_b32 v{T+4}, 5, v1",f"v_lshl_add_u32 v{T+3}, v{T+4}, 4, v{T+3}",f"v_add_u32 v{r.aA}, s44, v{T+3}",
      f"v_lshl_add_u32 v2, v{T}, 2, v{T+2}","v_lshlrev_b32 v2, 4, v2",
      f"v_cmp_eq_u32 s[42:43], v{T+1}, v{T+4}",f"v_mov_b32 v{T+5}, 1024","s_mul_i32 s86, s26, 9600",f"v_cndmask_b32 v{r.stREC}, 0, v{T+5}, s[42:43]")
    a(f"v_bfe_u32 v{T}, v1, 4, 1",f"v_and_b32 v{T+1}, 3, v1",f"v_lshlrev_b32 v{T+1}, 3, v{T+1}",f"v_lshl_add_u32 v{T}, v{T}, 5, v{T+1}",f"s_add_u32 s86, s86, {LQI}",f"v_add_u32 v{r.cQ}, s86, v{T}")
    for i in range(16): a(f"v_pk_mov_b32 v[{r.S[0]+2*i}:{r.S[0]+2*i+1}], v[{Z}:{Z+1}], v[{Z}:{Z+1}]")
    stamp(a,7)
    a("s_waitcnt vmcnt(16)","s_branch K2_HIST","K2_NOBULK:",f"s_mov_b32 s86, {WS_C+3072}",f"buffer_load_dwordx4 v[{WM}:{WM+3}], off, s[32:35], s86","s_waitcnt vmcnt(0)","K2_HIST:")
    stamp(a,8)
    LD=T; RN=T+4; AD=T+8; SV=T+12
    a(f"v_mov_b32 v{U}, 1")
    for k in range(4): a(f"v_bfe_u32 v{LD+k}, v{RK+4*k+2}, 16, 6",f"v_lshlrev_b32 v{AD+k}, 2, v{LD+k}")
    for k in range(4): a(f"s_mov_b64 exec, s[{72+2*k}:{73+2*k}]",f"ds_add_rtn_u32 v{RN+k}, v{AD+k}, v{U} offset:{LCNT}")
    a("s_mov_b64 exec, -1",f"v_mov_b32 v{U+1}, {BIAS}")
    for k in range(4): a(f"v_and_b32 v{SV+k}, 0x3fff, v{RK+4*k+2}",f"v_lshl_add_u32 v{SV+k}, v{SV+k}, 9, v{U+1}",f"v_mul_u32_u24 v{LD+k}, 192, v{LD+k}")
    a(f"v_lshlrev_b32 v{U}, 2, v1")
    a(f"v_and_b32 v{U+1}, 31, v1",f"v_lshrrev_b32 v{U+2}, 5, v1",f"v_and_b32 v{U+3}, 15, v1",f"v_xor_b32 v{U+3}, v{U+2}, v{U+3}",f"v_lshlrev_b32 v{U+3}, 4, v{U+3}",f"v_lshl_add_u32 v{U+8}, v{U+1}, 8, v{U+3}")
    for s in range(1,8): a(f"v_xor_b32 v{U+8+s}, {32*s}, v{U+8}")
    for s in range(8): a(f"v_add_u32 v{U+8+s}, {LXT}, v{U+8+s}")
    a("s_waitcnt vmcnt(14) lgkmcnt(0)","s_barrier")
    stamp(a,9)
    a(f"ds_read_b32 v{U+1}, v{U} offset:{LCNT}")
    a("s_cmp_lg_u32 s29, 0","s_cbranch_scc1 K2_NOQA")
    for nb in range(2):
        for s in range(8):
            if nb==1 and s==6: break
            a(f"ds_read_b128 v[{QA+32*nb+4*s}:{QA+32*nb+4*s+3}], v{U+8+s} offset:{8192*nb}")
    a("s_waitcnt lgkmcnt(14)")
    for s in (6,7): a(f"ds_read_b128 v[{QA+32+4*s}:{QA+32+4*s+3}], v{U+8+s} offset:8192")
    a("s_branch K2_QA","K2_NOQA:","s_waitcnt lgkmcnt(0)","K2_QA:")
    a(f"v_add_u32 v{vDEG}, v{vDEG}, v{U+1}",f"v_add_u32 v{U+1}, 3, v{U+1}",f"v_lshrrev_b32 v{U+1}, 2, v{U+1}",f"v_mov_b32 v{U+2}, v{U+1}")
    dpp_scan(a,"v_add_u32",[U+2])
    a("v_cmp_lt_u32 vcc, 24, v1",f"v_readlane_b32 s86, v{U+2}, 24",f"v_readlane_b32 s87, v{U+2}, 63",f"v_sub_u32 v{U+2}, v{U+2}, v{U+1}")
    a("s_sub_u32 s87, s87, s86","s_add_u32 s87, s87, 7","s_lshr_b32 s87, s87, 3",
      "s_add_u32 s88, s86, 7","s_lshr_b32 s88, s88, 3",
      "s_add_u32 s89, s88, 3","s_lshl_b32 s90, s89, 3","s_sub_u32 s90, s90, s86")
    a(f"v_mov_b32 v{U+1}, s90",f"v_cndmask_b32 v{U+1}, 0, v{U+1}, vcc",f"v_add_lshl_u32 v{U+2}, v{U+2}, v{U+1}, 2")
    for k in range(4): a(f"ds_bpermute_b32 v{AD+k}, v{AD+k}, v{U+2}")
    a("s_cmp_eq_u32 s25, 0","s_cselect_b32 s46, s88, s87","s_cselect_b32 s91, 0, s89")
    a(f"v_mov_b32 v{U+4}, 0x3f80",f"v_mov_b32 v{U+5}, 0",f"s_movk_i32 s92, {-DPAD}","s_movk_i32 s93, -128")
    a(f"s_lshl_b32 s94, s91, 9",f"s_add_u32 s94, s94, {LREC}",f"v_add_u32 v{U}, s94, v2",f"v_mov_b32 v{U+1}, {LZ}",f"v_cndmask_b32 v{r.aREC}, v{U+1}, v{U}, s[42:43]")
    a(f"s_lshl_b32 s94, s91, 7",f"s_add_u32 s94, s94, {LSRC}",f"v_lshrrev_b32 v{U}, 3, v1",f"v_lshl_add_u32 v{r.aSRC}, v{U}, 4, s94")
    a(f"s_lshl_b32 s94, s91, 5",f"s_add_u32 s94, s94, {LCH}",f"v_bfe_u32 v{U}, v1, 2, 2",f"v_lshrrev_b32 v{U+1}, 5, v1",f"v_lshl_add_u32 v{U}, v{U+1}, 2, v{U}",f"v_lshl_add_u32 v{r.aCH}, v{U}, 2, s94")
    a("s_waitcnt vmcnt(6) lgkmcnt(0)")
    QM=[f"{MF} v[{r.Y[nb]}:{r.Y[nb]+15}], v[{QA+32*nb+4*s}:{QA+32*nb+4*s+3}], v[{QB+4*s}:{QB+4*s+3}], "+("0" if s==0 else f"v[{r.Y[nb]}:{r.Y[nb]+15}]") for s in range(8) for nb in range(2)]
    for k in range(4):
        sl=AD+k
        a(QM[2*k],f"v_add_u32 v{sl}, v{sl}, v{RN+k}",
          f"v_bfe_u32 v{U+6}, v{sl}, 2, 3",f"v_and_b32 v{U+7}, 3, v{sl}",f"v_mad_i32_i24 v{SV+k}, v{U+6}, s93, v{SV+k}",f"v_mad_i32_i24 v{SV+k}, v{U+7}, s92, v{SV+k}",
          f"v_cmp_eq_u32 vcc, 0, v{U+7}",QM[2*k+1],
          f"v_lshlrev_b32 v{U+7}, 2, v{sl}",f"v_and_b32 v{U+6}, 48, v{U+7}",f"v_lshlrev_b64 v[{RK+4*k+2}:{RK+4*k+3}], v{U+6}, v[{U+4}:{U+5}]",f"v_lshlrev_b32 v{U+6}, 4, v{sl}",
          f"s_mov_b64 exec, s[{72+2*k}:{73+2*k}]",
          f"ds_write_b128 v{U+6}, v[{RK+4*k}:{RK+4*k+3}] offset:{LREC}",f"ds_write_b32 v{U+7}, v{SV+k} offset:{LSRC}",
          "s_and_b64 exec, exec, vcc",f"ds_write_b32 v{sl}, v{LD+k} offset:{LCH}","s_mov_b64 exec, -1")
    a("s_cmp_ge_u32 s24, 2","s_cbranch_scc1 K2_NOPS")
    a("s_cmp_eq_u32 s24, 0","s_cselect_b32 s94, s88, s87","s_cselect_b32 s95, 0, s89","s_add_u32 s94, s94, 1",
      f"v_lshrrev_b32 v{U}, 5, v1",f"v_add_u32 v{U}, s94, v{U}",f"v_and_b32 v{U}, 1, v{U}",
      f"v_and_b32 v{U+1}, 3, v1",f"v_bfe_u32 v{U+2}, v1, 2, 3",
      f"v_lshl_add_u32 v{U}, v{U}, 2, v{U+1}",f"v_lshl_add_u32 v{U}, v{U}, 3, v{U+2}",f"v_lshlrev_b32 v{U}, 9, v{U}",
      f"v_mad_i32_i24 v{U}, v{U+1}, s92, v{U}",f"v_mad_i32_i24 v{U}, v{U+2}, s93, v{U}",
      "s_add_u32 s94, s94, s95","s_lshl_b32 s94, s94, 7","s_lshl_b32 s95, s24, 15",f"s_add_u32 s95, s95, {W2ROW*512+BIAS}",f"v_add_u32 v{U}, s95, v{U}",
      f"v_lshl_add_u32 v{U+1}, v1, 2, s94",f"ds_write_b32 v{U+1}, v{U} offset:{LSRC}")
    a("K2_NOPS:")
    a("s_waitcnt lgkmcnt(0)","s_barrier")
    stamp(a,10)
    a(f"ds_read_b128 {v(r.DI,4)}, {v(r.aSRC)}",f"ds_read_b128 v[{U+8}:{U+11}], {v(r.aSRC)} offset:128",f"ds_read_b32 {v(r.chv)}, {v(r.aCH)}","s_mov_b32 m0, s44","s_waitcnt lgkmcnt(2)")
    for j in range(4): a(f"buffer_load_dwordx4 {v(r.DI+j)}, s[48:51], 0 offen offset:{DPAD*j} lds")
    EM=U+12
    a(f"v_mov_b32 v{EM}, 0","s_waitcnt vmcnt(4)")
    for k in range(4):
        a(QM[8+2*k],f"v_lshlrev_b32 v{U}, 16, v{RK+4*k}",f"v_and_b32 v{U+1}, 0xffff0000, v{RK+4*k}",f"v_lshlrev_b32 v{U+2}, 16, v{RK+4*k+1}",f"v_and_b32 v{U+3}, 0xffff0000, v{RK+4*k+1}",QM[9+2*k],
          f"v_mul_f32_e64 v{U}, |v{U}|, s80" .replace("s80",f"v{WMP}"),f"v_fma_f32 v{U}, |v{U+1}|, v{WMP+1}, v{U}",f"v_fma_f32 v{U}, |v{U+2}|, v{WMP+2}, v{U}",f"v_fma_f32 v{U}, |v{U+3}|, v{WMP+3}, v{U}",
          f"v_max_u32 v{EM}, v{EM}, v{U}")
    a("s_mov_b32 m0, s45","s_waitcnt lgkmcnt(0)")
    a("s_cmp_lg_u32 s29, 0","s_cbranch_scc1 K2_NOQW")
    a(f"s_mov_b32 s86, {f32(-LOG2E)}",f"s_lshr_b32 s88, s24, 1","s_mul_i32 s88, s88, 9600","s_and_b32 s89, s24, 1","s_lshl_b32 s89, s89, 1","s_add_u32 s88, s88, s89",f"s_add_u32 s88, s88, {LQI}",
      f"v_lshrrev_b32 v{U}, 5, v1",f"v_and_b32 v{U+1}, 31, v1",f"v_mul_u32_u24 v{U}, 768, v{U}",f"v_lshl_add_u32 v{U}, v{U+1}, 2, v{U}",f"v_add_u32 v{U}, s88, v{U}")
    a(f"v_max3_u32 v{U+13}, v{PMR}, v{PMR+1}, v{PMR+2}",f"v_max_u32 v{U+13}, v{U+13}, v{PMR+3}",f"v_mov_b32 v{U+14}, 0",f"v_lshlrev_b32 v{vB2}, 16, v{vB2}")
    for nb in range(2):
        Y=r.Y[nb]
        nreg=16 if nb==0 else 10
        for m in range(nreg//2):
            a(f"v_fma_f32 v{Y+2*m}, v{Y+2*m}, s86, v{B1R}",f"v_fma_f32 v{Y+2*m+1}, v{Y+2*m+1}, s86, v{B1R}")
            a(f"v_cvt_pk_bf16_f32 v{U+1+(m&1)}, v{Y+2*m}, v{Y+2*m+1}",f"v_max3_f32 v{U+14}, |v{Y+2*m}|, |v{Y+2*m+1}|, v{U+14}")
            i,j=(2*m)>>2,(2*m)&3
            off=(32*nb+8*i+j)*192
            if nb==1 and m==4:
                a("s_mov_b32 exec_hi, 0",f"ds_write_b16 v{U}, v{U+1+(m&1)} offset:{off}","s_mov_b32 exec_hi, -1")
            else:
                a(f"ds_write_b16 v{U}, v{U+1+(m&1)} offset:{off}",f"ds_write_b16_d16_hi v{U}, v{U+1+(m&1)} offset:{off+192}")
    a("s_branch K2_QW","K2_NOQW:",f"v_mov_b32 v{U+13}, 0",f"v_mov_b32 v{U+14}, 0","K2_QW:")
    dpp_scan(a,"v_max_u32",[EM,U+13,U+14])
    for j in range(4): a(f"buffer_load_dwordx4 v{U+8+j}, s[48:51], 0 offen offset:{DPAD*j} lds")
    a("s_add_u32 s88, s30, 255","s_lshr_b32 s88, s88, 8",f"v_mov_b32 v{U+2}, s88",f"v_mov_b32 v{U+3}, {LB}")
    a("s_mov_b32 exec_lo, 0","s_brev_b32 exec_hi, 1",f"ds_max_u32 v{U+3}, v{U+13}",f"ds_max_u32 v{U+3}, v{U+14} offset:4",f"ds_max_u32 v{U+3}, v{EM} offset:8",f"ds_max_u32 v{U+3}, v{U+2} offset:12","s_mov_b64 exec, -1")
    for i in range(4): a(f"v_mov_b32 v{r.OH+i}, 0",f"v_mov_b32 v{r.H[0]+i}, 0",f"v_mov_b32 v{r.H[1]+i}, 0")
    a(f"v_add_u32 {v(r.aQ[0])}, {v(r.chv)}, {v(r.cQ)}")
    a("s_waitcnt lgkmcnt(0)","s_barrier")
    stamp(a,11)
    a(f"ds_read_b128 v[{T}:{T+3}], v{U+3}",
      f"ds_read_b128 {v(r.AX,4)}, {v(r.aREC)}",f"ds_read_b64_tr_b16 {v(r.BX[0]+2,2)}, {v(r.aQ[0])}",f"ds_read_b64_tr_b16 {v(r.BX[1]+2,2)}, {v(r.aQ[0])} offset:64",
      f"ds_read_b128 {v(r.DI,4)}, {v(r.aSRC)} offset:256",f"ds_read_b32 {v(r.chv)}, {v(r.aCH)} offset:32","s_waitcnt vmcnt(4)")
    for q in range(4): a(f"ds_read_b128 {v(r.AF[q],4)}, {v(r.aA)} offset:{32*q}")
    a("s_mov_b32 m0, s44","s_waitcnt lgkmcnt(9)",f"v_add_f32 v{T}, v{T}, v{T+1}",f"v_add_f32 v{T}, v{T}, v{T+2}",f"v_readfirstlane_b32 s47, v{T+3}",f"v_readfirstlane_b32 s92, v{T}","s_waitcnt lgkmcnt(0)")
    a(f"{MF} {v(r.Y[0],16)}, {v(r.AF[0],4)}, {v(r.BS[0],4)}, 0",f"{MF} {v(r.Y[0],16)}, {v(r.AF[1],4)}, {v(r.BS[1],4)}, {v(r.Y[0],16)}",f"{MF} {v(r.Y[0],16)}, {v(r.AX,4)}, {v(r.BX[0],4)}, {v(r.Y[0],16)}")
    for j in range(4): a(f"buffer_load_dwordx4 {v(r.DI+j)}, s[48:51], 0 offen offset:{DPAD*j} lds")
    stamp(a,12)
    if STAMP and FINE: a("s_memtime s[100:101]","s_waitcnt lgkmcnt(0)","s_mov_b32 s4, s100","s_mov_b32 s6, s46")
    a("s_cmp_eq_u32 s46, 0","s_cbranch_scc1 K2_DONE")
    a("s_nop 4",f"s_cmp_le_u32 s92, {f32(THR)}","s_cbranch_scc0 K2_LOOP_S")
    for nm,fast in (("F",True),("S",False)):
        if nm=="F": a(".p2align 6")
        a(f"K2_LOOP_{nm}:")
        a(tile(r,0,fast))
        a("s_sub_u32 s46, s46, 1","s_cmp_eq_u32 s46, 0","s_cbranch_scc1 K2_EXITA")
        a(tile(r,1,fast))
        a("s_sub_u32 s46, s46, 1","s_cmp_lg_u32 s46, 0",f"s_cbranch_scc1 K2_LOOP_{nm}")
        a("s_branch K2_EXITB")
    a("K2_EXITA:",f"v_mov_b32 v{r.OH+2}, 0",f"v_mov_b32 v{r.OH+3}, 0","s_nop 1",f"{MF} {v(r.S[0],16)}, {v(r.H[0],4)}, {v(r.OH,4)}, {v(r.S[0],16)}")
    a("K2_EXITB:","s_nop 1",f"{MF} {v(r.S[1],16)}, {v(r.H[1],4)}, {v(r.OH,4)}, {v(r.S[1],16)}")
    a("K2_DONE:","s_setprio 0","s_add_u32 s29, s29, 1","s_add_u32 s31, s31, 256","s_cmp_lt_u32 s29, s47","s_waitcnt vmcnt(0) lgkmcnt(0)","s_cbranch_scc0 K2_EPI")
    a("s_nop 7","s_barrier","s_branch K2_PASS")
    a("K2_EPI:")
    stamp(a,13)
    if STAMP and FINE: a("s_memtime s[100:101]","s_waitcnt lgkmcnt(0)","s_sub_u32 s5, s100, s4")
    a("v_and_b32 v3, 31, v1","v_lshlrev_b32 v2, 1, v3")
    a(f"s_mov_b32 s86, {f32(-math.log(2))}",f"s_mov_b32 s87, {f32(-math.log(2))}")
    a(f"v_cvt_f32_u32 v{T}, v{vDEG}",f"v_cmp_lt_u32 vcc, 24, v1",f"v_mov_b32 v{T+1}, 7",f"v_lshrrev_b32 v{T+3}, 5, v1",f"v_cndmask_b32 v{T+1}, 0, v{T+1}, vcc",f"v_add_u32 v{T+1}, v{T+1}, v1",f"v_min_u32 v{T+1}, 63, v{T+1}",f"v_lshlrev_b32 v{T+1}, 2, v{T+1}",f"ds_write_b32 v{T+1}, v{T} offset:{LDEG}")
    a(f"s_lshl_b32 s88, s25, 5",f"v_add_u32 v{T+4}, s88, v3",f"v_mul_u32_u24 v{T+4}, 528, v{T+4}",
      f"s_lshl_b32 s88, s26, 7",f"v_lshl_add_u32 v{T+5}, v{T+3}, 5, s88",f"v_add_u32 v{T+5}, v{T+5}, v{T+4}",
      f"v_lshl_add_u32 v{T+4}, v{T+3}, 4, v{T+4}")
    for i in range(16): a(f"v_pk_mul_f32 v[{r.S[0]+2*i}:{r.S[0]+2*i+1}], v[{r.S[0]+2*i}:{r.S[0]+2*i+1}], s[86:87]")
    for i in range(16): a(f"v_cvt_pk_bf16_f32 v{r.Y[0]+i}, v{r.S[0]+2*i}, v{r.S[0]+2*i+1}")
    a(f"s_mul_i32 s88, s26, {4*SLOT}",f"s_add_u32 s88, s88, {LRING}",f"v_lshl_add_u32 v{T+6}, v1, 4, s88")
    a(f"s_lshl_b32 s88, s25, 7",f"v_lshl_add_u32 v{T+7}, v{T+3}, 4, s88")
    a("s_mul_i32 s88, s25, 25","s_add_u32 s88, s88, s27","s_lshl_b32 s88, s88, 8","s_add_u32 s68, s20, s88","s_addc_u32 s69, s21, 0","s_and_b32 s69, s69, 0xffff",
      "s_sub_u32 s88, s28, 25","s_cmp_eq_u32 s25, 0","s_cselect_b32 s88, 25, s88","s_lshl_b32 s70, s88, 8","s_mov_b32 s71, 0x20000","s_movk_i32 s89, 0x1000")
    a(f"s_lshl_b32 s88, s26, 6",f"v_lshl_add_u32 v{T+8}, v{T+3}, 10, s88",f"v_add_u32 v{T+8}, v{T+8}, v2")
    a("s_waitcnt lgkmcnt(0)","s_barrier")
    for q in range(4): a(f"ds_write_b128 v{T+5}, v[{r.Y[0]+4*q}:{r.Y[0]+4*q+3}] offset:{LREC+64*(q>>1)+16*(q&1)}")
    for i in range(4): a(f"ds_read_b128 v[{r.Y[1]+4*i}:{r.Y[1]+4*i+3}], v{T+7} offset:{LDEG+32*i}")
    for s in range(7): a(f"ds_read_b128 v[{QB+4*s}:{QB+4*s+3}], v{T+6} offset:{(s>>3)*2*SLOT+((s>>2)&1)*SLOT+(s&3)*DPAD}")
    a("s_waitcnt lgkmcnt(11)","s_barrier")
    stamp(a,14)
    fr=[r.S[0]+4*i for i in range(8)]+[r.AF[i] for i in range(4)]+[r.N[0]+4*i for i in range(4)]
    for s in range(4): a(f"ds_read_b128 v[{fr[s]}:{fr[s]+3}], v{T+4} offset:{LREC+32*s}")
    a("s_waitcnt lgkmcnt(11)")
    for i in range(16): a(f"v_mul_f32 v{r.Y[1]+i}, v{r.Y[1]+i}, v{vB2}")
    a("s_nop 0")
    for s in range(16):
        n_after=0
        pend=[]
        if s+4<16: pend.append(f"ds_read_b128 v[{fr[s+4]}:{fr[s+4]+3}], v{T+4} offset:{LREC+32*(s+4)}")
        if s+7<16: q=s+7; pend.append(f"ds_read_b128 v[{QB+4*q}:{QB+4*q+3}], v{T+6} offset:{(q>>3)*2*SLOT+((q>>2)&1)*SLOT+(q&3)*DPAD}")
        EP.append(pend)
    issued=[('B',q) for q in range(7)]+[('A',q) for q in range(4)]
    for s in range(16):
        need_=max(issued.index(('A',s)),issued.index(('B',s)))
        a(f"s_waitcnt lgkmcnt({len(issued)-1-need_})",f"{MF} {v(r.Y[1],16)}, v[{fr[s]}:{fr[s]+3}], v[{QB+4*s}:{QB+4*s+3}], {v(r.Y[1],16)}")
        for x in EP[s]: a(x)
        if s+4<16: issued.append(('A',s+4))
        if s+7<16: issued.append(('B',s+7))
    a("s_nop 11")
    for m in range(8):
        i,j=(2*m)>>2,(2*m)&3
        a(f"v_cvt_pk_bf16_f32 v{r.Y[0]+m}, v{r.Y[1]+2*m}, v{r.Y[1]+2*m+1}")
        so="0" if i<2 else "s89"; off=((8*i+j)*256)&4095
        a(f"buffer_store_short v{r.Y[0]+m}, v{T+8}, s[68:71], {so} offen offset:{off}",f"buffer_store_short_d16_hi v{r.Y[0]+m}, v{T+8}, s[68:71], {so} offen offset:{off+256}")
    stamp(a,15)
    stamp_flush(a,22,1,24,list(range(3,17)))
    a("K2_END:","s_endpgm")
    return a.text(), 256, (102 if STAMP else 96)
HEADER=open('standalone__edge_featured_mpnn_mpnn__graph.s.ref').read().split('; Override')[0]
def build(fn):
    t1,v1,s1=gen_k1(); t2,v2,s2=gen_k2()
    for nm,t in (('k1',t1),('k2',t2)):
        h=hazard.check(t); print(nm, "\n".join(h) or "no hazards")
    out=HEADER+f"; @launch kernel=mpnn_k1_kernel grid=({K1_GRID},1,1) block=(512,1,1) lds={K1_LDS}\n; @launch kernel=mpnn_k2_kernel grid=(256,1,1) block=(512,1,1) lds={K2_LDS}\n"
    out+='.amdgcn_target "amdgcn-amd-amdhsa--gfx950"\n.text\n'
    for nm,t in (('mpnn_k1_kernel',t1),('mpnn_k2_kernel',t2)):
        out+=f".globl {nm}\n.p2align 8\n.type {nm},@function\n"+t
    out+=kd('mpnn_k1_kernel',v1,s1)+kd('mpnn_k2_kernel',v2,s2)
    open(fn,'w').write(out)
    print("LDS k2",K2_LDS)
if __name__=='__main__':
    if len(sys.argv)>2 and 'stamp' in sys.argv[2]: STAMP=True
    for o in sys.argv[3:]:
        k,val=o.split('=',1); globals()[k]=eval(val)
    build(sys.argv[1] if len(sys.argv)>1 else 'standalone__edge_featured_mpnn_mpnn__graph.s')
```

```python
import sys, struct, math
from mainloop import *
import hazard
def f32(x): return "0x%08x" % struct.unpack('<I',struct.pack('<f',x))[0]
LOG2E=math.log2(math.e)
N=12500; E=400000
NCH=250; CH=1600
NPW=196
K1_GRID=NCH+NPW+2
BIAS=4096
WS_P=BIAS; ZROW=12500; W2ROW=12504
WS_R=8<<20; WS_O=14<<20; WS_W1=15<<20; WS_PM=(15<<20)+(1<<17); WS_C=WS_PM+8192; WS_SIZE=16<<20
BM=21475; SM=399997; SA=8191
class A:
    def __init__(s): s.l=[]
    def __call__(s,*xs):
        for x in xs:
            if isinstance(x,(list,tuple)): s(*x); continue
            for y in x.split('\n'):
                y=y.strip()
                if y: s.l.append(y if y.endswith(':') else '    '+y)
    def text(s): return "\n".join(s.l)+"\n"
def srd(a,d,lo,hi,size,off=None,w3=0x20000,stride=0):
    if off is None:
        a(f"s_mov_b32 s{d}, s{lo}"); a(f"s_and_b32 s{d+1}, s{hi}, 0xffff")
    else:
        a(f"s_add_u32 s{d}, s{lo}, {off}"); a(f"s_addc_u32 s{d+1}, s{hi}, 0"); a(f"s_and_b32 s{d+1}, s{d+1}, 0xffff")
    if stride: a(f"s_or_b32 s{d+1}, s{d+1}, {stride<<16}")
    a(f"s_mov_b32 s{d+2}, {size}"); a(f"s_mov_b32 s{d+3}, {hex(w3)}")
def dpp_scan(a, op, regs_, zero_fill=True):
    steps=["row_shr:1 row_mask:0xf bank_mask:0xf bound_ctrl:0","row_shr:2 row_mask:0xf bank_mask:0xf bound_ctrl:0","row_shr:4 row_mask:0xf bank_mask:0xf bound_ctrl:0","row_shr:8 row_mask:0xf bank_mask:0xf bound_ctrl:0",
           "row_bcast:15 row_mask:0xa bank_mask:0xf","row_bcast:31 row_mask:0xc bank_mask:0xf"]
    for st in steps:
        if len(regs_)<3: a(f"s_nop {2-len(regs_)}") if len(regs_)<2 else a("s_nop 0")
        for r_ in regs_: a(f"{op}_dpp v{r_}, v{r_}, v{r_} {st}")
def kd(name, vgpr, sgpr):
    return f""".section .rodata,"a"
.p2align 6
.amdhsa_kernel {name}
  .amdhsa_next_free_vgpr {vgpr}
  .amdhsa_next_free_sgpr {sgpr}
  .amdhsa_accum_offset {(vgpr+3)//4*4}
  .amdhsa_group_segment_fixed_size 0
  .amdhsa_kernarg_size 88
  .amdhsa_user_sgpr_count 2
  .amdhsa_user_sgpr_kernarg_segment_ptr 1
  .amdhsa_system_sgpr_workgroup_id_x 1
.end_amdhsa_kernel
"""
STAMP=False
STF=''
NOST=False
FINE=False
NOREC=False
WS_ST=24<<20
def stamp(a, sreg):
    if not STAMP: return
    a("s_memrealtime s[100:101]","s_waitcnt lgkmcnt(0)",f"s_mov_b32 s{sreg}, s100")
DBGST=False
def dbg_flush(a, kern, sW, items):
    a("s_waitcnt vmcnt(0)")
    stamp(a, items[-1][1])
    a("s_load_dwordx2 s[96:97], s[0:1], 72","s_waitcnt lgkmcnt(0)")
    if kern==1: a("s_sub_u32 s96, s96, 512","s_subb_u32 s97, s97, 0")
    a("s_and_b32 s97, s97, 0xffff","s_mov_b32 s98, 256","s_mov_b32 s99, 0x20000","s_mov_b64 exec, 1","v_mov_b32 v3, 0")
    for slot,sr,inv in items:
        a(f"v_mov_b32 v2, s{sr}")
        if inv: a("v_not_b32 v2, v2")
        a(f"buffer_atomic_umax v2, v3, s[96:99], 0 offen offset:{4*slot}")
def stamp_flush(a, wslo, kern, sW, sregs):
    if not STAMP: return
    if DBGST:
        if kern==0: dbg_flush(a,0,sW,[(0,72,1),(1,72,0),(2,73,0),(3,76,0)])
        else: dbg_flush(a,1,sW,[(4,3,1),(5,5,0),(6,8,0),(7,9,0),(8,10,0),(9,11,0),(10,12,0),(11,13,1),(12,13,0),(13,16,0)])
        return
    a("s_waitcnt vmcnt(0)")
    stamp(a, sregs[-1])
    a(f"s_add_u32 s96, s{wslo}, {WS_ST}",f"s_addc_u32 s97, s{wslo+1}, 0","s_and_b32 s97, s97, 0xffff","s_mov_b32 s98, 0x800000","s_mov_b32 s99, 0x20000")
    a(f"s_add_u32 s100, s2, {kern*512}","s_lshl_b32 s100, s100, 3",f"s_add_u32 s100, s100, s{sW}","s_lshl_b32 s100, s100, 6","s_mov_b64 exec, 1","v_mov_b32 v3, 0")
    for q,sr in enumerate(sregs): a(f"v_mov_b32 v2, s{sr}",f"buffer_store_dword v2, v3, s[96:99], s100 offen offset:{4*q}")
K1_LDS=81920
def stage_w(a, sW, srdq):
    a("v_lshrrev_b32 v2, 5, v1","v_and_b32 v3, 31, v1","v_lshlrev_b32 v4, 2, v2","v_xor_b32 v3, v3, v4","v_lshlrev_b32 v3, 4, v3","v_lshl_add_u32 v3, v2, 9, v3","v_xor_b32 v4, 0x80, v3")
    a(f"s_lshl_b32 s60, s{sW}, 13","s_add_u32 s61, s60, 4096","s_mov_b32 m0, s60","s_nop 0")
    for q in range(8):
        if q==4: a("s_mov_b32 m0, s61","s_nop 0")
        a(f"buffer_load_dwordx4 v{3+(q&1)}, s[{srdq}:{srdq+3}], s{60+(q>>2)} offen offset:{1024*(q&3)} lds")
def bfrag_addr(a, sW):
    a("v_bfe_u32 v2, v1, 2, 2",
      "v_lshrrev_b32 v3, 5, v1",
      "v_lshl_add_u32 v3, v3, 3, v2",
      "v_bfe_u32 v4, v1, 4, 1","v_bfe_u32 v5, v1, 1, 1","v_lshl_add_u32 v4, v4, 1, v5",
      f"s_and_b32 s62, s{sW}, 3","s_lshl_b32 s62, s62, 3","v_add_u32 v4, s62, v4",
      "v_lshlrev_b32 v2, 2, v2","v_xor_b32 v4, v4, v2",
      "v_lshlrev_b32 v4, 4, v4","v_lshl_add_u32 v4, v3, 9, v4",
      "v_and_b32 v2, 1, v1","v_lshl_add_u32 v5, v2, 3, v4","v_xor_b32 v6, 64, v5")
def gen_k1():
    a=A()
    a("mpnn_k1_kernel:")
    a(f"s_cmp_ge_u32 s2, {K1_GRID}","s_cbranch_scc1 K1_END")
    stamp(a,72)
    a("s_load_dwordx16 s[4:19], s[0:1], 0","s_load_dwordx2 s[20:21], s[0:1], 80")
    a("v_and_b32 v1, 63, v0","v_lshrrev_b32 v2, 6, v0","s_nop 0","v_readfirstlane_b32 s22, v2")
    a("s_waitcnt lgkmcnt(0)")
    a(f"s_cmp_lt_u32 s2, {NPW+2}","s_cbranch_scc1 K1_GEMM",f"s_sub_u32 s2, s2, {NPW+2}")
    a(f"s_mul_i32 s23, s2, {CH*4}")
    for d,(lo,hi) in ((24,(10,11)),(28,(8,9))):
        a(f"s_add_u32 s{d}, s{lo}, s23",f"s_addc_u32 s{d+1}, s{hi}, 0",f"s_and_b32 s{d+1}, s{d+1}, 0xffff",f"s_mov_b32 s{d+2}, {CH*4}",f"s_mov_b32 s{d+3}, 0x20000")
    a("s_lshl_b32 s23, s23, 1","s_add_u32 s32, s6, s23","s_addc_u32 s33, s7, 0","s_and_b32 s33, s33, 0xffff",f"s_mov_b32 s34, {CH*8}","s_mov_b32 s35, 0x20000")
    a(f"s_mul_i32 s23, s2, {CH*12}",f"s_add_u32 s23, s23, {WS_R}","s_add_u32 s36, s20, s23","s_addc_u32 s37, s21, 0","s_and_b32 s37, s37, 0xffff",f"s_mov_b32 s38, {0 if NOREC else CH*12}","s_mov_b32 s39, 0x20000")
    a(f"s_lshl_b32 s23, s2, 10",f"s_add_u32 s23, s23, {WS_O}","s_add_u32 s40, s20, s23","s_addc_u32 s41, s21, 0","s_and_b32 s41, s41, 0xffff","s_mov_b32 s42, 1024","s_mov_b32 s43, 0x20000")
    a("v_lshlrev_b32 v2, 4, v0","v_lshlrev_b32 v3, 5, v0")
    a("buffer_load_dwordx4 v[8:11], v2, s[24:27], 0 offen","buffer_load_dwordx4 v[12:15], v2, s[28:31], 0 offen",
      "buffer_load_dwordx4 v[16:19], v3, s[32:35], 0 offen","buffer_load_dwordx4 v[20:23], v3, s[32:35], 0 offen offset:16")
    a("v_and_b32 v4, 255, v0","v_lshlrev_b32 v4, 2, v4","v_mov_b32 v5, 0","ds_write_b32 v4, v5","v_mov_b32 v6, 1")
    a(f"v_cmp_gt_u32 s[44:45], {CH//4}, v0" if False else f"s_movk_i32 s46, {CH//4}", "v_cmp_gt_u32 s[44:45], s46, v0")
    a(f"s_mov_b32 s47, {BM}",f"s_mov_b32 s48, {SM}",f"v_mov_b32 v7, {SA}")
    a("s_waitcnt lgkmcnt(0)","s_barrier")
    a("s_mov_b64 exec, s[44:45]","s_waitcnt vmcnt(3)")
    stamp(a,73)
    for j in range(4): a(f"v_mul_u32_u24 v{24+j}, s47, v{8+j}")
    for j in range(4): a(f"v_lshrrev_b32 v{24+j}, 20, v{24+j}")
    for j in range(4): a(f"v_lshlrev_b32 v{28+j}, 2, v{24+j}")
    for j in range(4): a(f"ds_add_rtn_u32 v{32+j}, v{28+j}, v6")
    for j in range(4): a(f"v_mad_u32_u24 v{24+j}, v{24+j}, s48, v7")
    for j in range(4): a(f"v_lshrrev_b32 v{24+j}, 13, v{24+j}")
    for j in range(4): a(f"v_sub_u32 v{24+j}, v{8+j}, v{24+j}")
    a("s_waitcnt vmcnt(2)")
    for j in range(4): a(f"v_lshl_or_b32 v{24+j}, v{24+j}, 16, v{12+j}")
    a("s_mov_b64 exec, -1","v_lshlrev_b32 v4, 4, v1","s_waitcnt lgkmcnt(0)","s_barrier")
    stamp(a,74)
    a("ds_read_b128 v[36:39], v4","s_waitcnt lgkmcnt(0)")
    a("v_add_u32 v41, v36, v37","v_add_u32 v42, v41, v38","v_add_u32 v43, v42, v39","v_mov_b32 v44, v43")
    dpp_scan(a,"v_add_u32",[44])
    a("v_sub_u32 v44, v44, v43","v_add_u32 v45, v44, v36","v_add_u32 v46, v44, v41","v_add_u32 v47, v44, v42")
    a("ds_write_b128 v4, v[44:47] offset:1024")
    a("s_cmp_lg_u32 s22, 7","s_cbranch_scc1 K1_P1")
    for j in range(4): a(f"v_lshl_or_b32 v{48+j}, v{36+j}, 16, v{44+j}")
    a("buffer_store_dwordx4 v[48:51], v4, s[40:43], 0 offen")
    a("K1_P1:")
    a("s_mov_b64 exec, s[44:45]","s_waitcnt lgkmcnt(0)")
    for j in range(4): a(f"ds_read_b32 v{36+j}, v{28+j} offset:1024")
    a("v_mov_b32 v7, 2048","s_waitcnt lgkmcnt(0)")
    for j in range(4): a(f"v_add_u32 v{36+j}, v{36+j}, v{32+j}")
    for j in range(4): a(f"v_mad_u32_u24 v{36+j}, v{36+j}, 12, v7")
    a("s_waitcnt vmcnt(0)")
    for j in range(4):
        a(f"ds_write2_b32 v{36+j}, v{16+2*j}, v{17+2*j} offset0:0 offset1:1",f"ds_write_b32 v{36+j}, v{24+j} offset:8")
    a("s_mov_b64 exec, -1","s_waitcnt lgkmcnt(0)","s_barrier")
    stamp(a,75)
    for k in range(3): a(f"ds_read_b128 v[{8+4*k}:{11+4*k}], v2 offset:{2048+8192*k}")
    a("s_movk_i32 s46, 0x2000","s_movk_i32 s47, 0x4000")
    for k in range(3): a(f"s_waitcnt lgkmcnt({2-k})", f"buffer_store_dwordx4 v[{8+4*k}:{11+4*k}], v2, s[36:39], {('0','s46','s47')[k]} offen {STF}")
    if STAMP: a(f"s_add_u32 s2, s2, {NPW+2}")
    stamp_flush(a,20,0,22,[72,73,74,75,76])
    a("s_endpgm")
    a("K1_GEMM:")
    srd(a,28,20,21,WS_SIZE)
    a(f"s_cmp_lt_u32 s2, 2","s_cbranch_scc1 K1_PREP")
    srd(a,24,12,13,65536)
    srd(a,32,4,5,N*256)
    srd(a,36,20,21,(0 if NOST else N*512),off=WS_P)
    stage_w(a,22,24)
    a(f"s_sub_u32 s23, s2, 2")
    a("v_lshrrev_b32 v2, 4, v1","s_and_b32 s62, s22, 1","s_lshl_b32 s62, s62, 3","v_add_u32 v3, s62, v2","v_and_b32 v4, 15, v1","v_xor_b32 v3, v3, v4","v_lshlrev_b32 v3, 4, v3","v_lshl_add_u32 v3, v2, 8, v3","v_xor_b32 v4, 64, v3")
    a("s_lshl_b32 s60, s22, 11","s_add_u32 s61, s60, 65536","s_lshl_b32 s62, s23, 14","s_add_u32 s60, s60, s62","s_mov_b32 m0, s61","s_nop 0")
    a("buffer_load_dwordx4 v3, s[32:35], s60 offen lds","buffer_load_dwordx4 v4, s[32:35], s60 offen offset:1024 lds")
    bfrag_addr(a,22)
    a("v_and_b32 v2, 31, v1","v_lshrrev_b32 v3, 5, v1","v_and_b32 v4, 15, v1","v_xor_b32 v3, v3, v4","v_lshlrev_b32 v3, 4, v3","v_lshl_add_u32 v3, v2, 8, v3",
      "s_lshr_b32 s62, s22, 2","s_lshl_b32 s63, s62, 13","s_add_u32 s63, s63, 65536","v_add_u32 v7, s63, v3")
    for s in range(1,8): a(f"v_xor_b32 v{8+s}, {32*s}, v7")
    a("v_mov_b32 v8, v7")
    a("v_lshrrev_b32 v2, 5, v1","v_and_b32 v3, 31, v1","v_lshlrev_b32 v3, 2, v3","v_lshl_add_u32 v16, v2, 11, v3",
      "s_and_b32 s63, s22, 3","s_lshl_b32 s63, s63, 7","s_lshl_b32 s64, s23, 15","s_lshl_b32 s62, s62, 14","s_add_u32 s64, s64, s62","s_add_u32 s64, s64, s63",
      "s_add_u32 s65, s64, 4096","s_add_u32 s66, s64, 8192","s_add_u32 s67, s64, 12288")
    a(f"s_mov_b32 s70, {f32(-LOG2E)}",f"s_mov_b32 s71, {f32(-LOG2E)}")
    a("s_waitcnt vmcnt(0)","s_barrier")
    stamp(a,73)
    AFR=20; BFR=52; ACC=84
    for s in range(8):
        a(f"ds_read_b128 v[{AFR+4*s}:{AFR+4*s+3}], v{8+s}")
        for tt in range(2):
            for u in range(2):
                b=BFR+8*(s%4)+4*tt+2*u
                a(f"ds_read_b64_tr_b16 v[{b}:{b+1}], v{5+tt} offset:{(16*s+4*u)*512}")
        if s>=2:
            q=s-2
            a("s_waitcnt lgkmcnt(10)")
            for tt in range(2): a(f"{MF} v[{ACC+16*tt}:{ACC+16*tt+15}], v[{AFR+4*q}:{AFR+4*q+3}], v[{BFR+8*(q%4)+4*tt}:{BFR+8*(q%4)+4*tt+3}], "+("0" if q==0 else f"v[{ACC+16*tt}:{ACC+16*tt+15}]"))
    for q in (6,7):
        a(f"s_waitcnt lgkmcnt({5*(7-q)})")
        for tt in range(2): a(f"{MF} v[{ACC+16*tt}:{ACC+16*tt+15}], v[{AFR+4*q}:{AFR+4*q+3}], v[{BFR+8*(q%4)+4*tt}:{BFR+8*(q%4)+4*tt+3}], v[{ACC+16*tt}:{ACC+16*tt+15}]")
    a("v_mov_b32 v17, 0","s_nop 10")
    stamp(a,74)
    for i in range(16): a(f"v_pk_mul_f32 v[{ACC+2*i}:{ACC+2*i+1}], v[{ACC+2*i}:{ACC+2*i+1}], s[70:71]")
    for i in range(16):
        a(f"v_cvt_pk_bf16_f32 v{20+i}, v{ACC+i}, v{ACC+16+i}", f"v_max3_f32 v17, |v{ACC+i}|, |v{ACC+16+i}|, v17")
        a(f"buffer_store_dword v{20+i}, v16, s[36:39], s{64+(i>>2)} offen offset:{512*(i&3)} {STF}")
    dpp_scan(a,"v_max_u32",[17])
    a("s_lshl_b32 s62, s23, 3","s_add_u32 s62, s62, s22","s_lshl_b32 s62, s62, 2",f"s_add_u32 s62, s62, {WS_PM}")
    a("v_mov_b32 v2, 0","s_mov_b32 exec_lo, 0","s_brev_b32 exec_hi, 1","buffer_store_dword v17, v2, s[28:31], s62 offen")
    stamp(a,75)
    stamp_flush(a,20,0,22,[72,73,74,75,76])
    a("s_endpgm")
    a("K1_PREP:")
    a(f"s_cmp_eq_u32 s2, 1","s_cbranch_scc1 K1_PREP2")
    srd(a,24,12,13,65536,off=65536)
    stage_w(a,22,24)
    bfrag_addr(a,22)
    a("s_lshr_b32 s62, s22, 2","s_lshl_b32 s63, s62, 6","v_xor_b32 v5, s63, v5")
    a("s_and_b32 s63, s22, 3","s_lshl_b32 s63, s63, 1","s_add_u32 s63, s63, s62","s_lshl_b32 s63, s63, 13",f"s_add_u32 s63, s63, {WS_W1}","s_add_u32 s64, s63, 4096")
    srd(a,32,12,13,260*512); srd(a,36,14,15,512)
    a("v_and_b32 v8, 255, v0","v_lshrrev_b32 v2, 6, v8","v_bfe_u32 v3, v8, 5, 1","v_lshlrev_b32 v2, 7, v2","v_lshl_add_u32 v2, v3, 5, v2","v_and_b32 v3, 1, v8","v_lshl_add_u32 v2, v3, 6, v2","v_bfe_u32 v3, v8, 1, 4","v_lshl_add_u32 v2, v3, 1, v2",f"s_mov_b32 s65, {256*512}")
    for k in range(4): a(f"buffer_load_ushort v{10+k}, v2, s[32:35], s65 offen offset:{512*k}")
    a("v_lshlrev_b32 v2, 1, v8","buffer_load_ushort v14, v2, s[36:39], 0 offen")
    a("v_lshlrev_b32 v7, 4, v1","s_waitcnt vmcnt(0)","s_barrier")
    for k in range(5): a(f"v_lshlrev_b32 v{10+k}, 16, v{10+k}",f"v_mul_f32 v{10+k}, {f32(-LOG2E)}, v{10+k}")
    a("v_cvt_pk_bf16_f32 v10, v10, v11","v_cvt_pk_bf16_f32 v11, v12, v13","v_lshlrev_b32 v2, 3, v8","v_lshlrev_b32 v3, 2, v8",f"s_mov_b32 s65, {WS_C}")
    a("buffer_store_dwordx2 v[10:11], v2, s[28:31], s65 offen","buffer_store_dword v14, v3, s[28:31], s65 offen offset:2048")
    for s in range(8):
        for u in range(2): a(f"ds_read_b64_tr_b16 v[{20+4*s+2*u}:{21+4*s+2*u}], v5 offset:{(16*s+4*u)*512}")
    a("s_waitcnt lgkmcnt(0)")
    for s in range(8): a(f"buffer_store_dwordx4 v[{20+4*s}:{23+4*s}], v7, s[28:31], s{63+(s>>2)} offen offset:{1024*(s&3)}")
    a("s_endpgm")
    a("K1_PREP2:")
    srd(a,24,16,17,65536)
    srd(a,32,12,13,260*512)
    a("v_lshlrev_b32 v7, 4, v1","s_lshl_b32 s60, s22, 13","s_add_u32 s61, s60, 4096","s_mov_b32 m0, s60","s_nop 0")
    for q in range(8):
        if q==4: a("s_mov_b32 m0, s61","s_nop 0")
        a(f"buffer_load_dwordx4 v7, s[24:27], s{60+(q>>2)} offen offset:{1024*(q&3)} lds")
    a("s_and_b32 s62, s22, 3","s_lshl_b32 s62, s62, 9",f"s_add_u32 s62, s62, {256*512}","v_lshlrev_b32 v2, 3, v1","buffer_load_dwordx2 v[8:9], v2, s[32:35], s62 offen")
    a("v_bfe_u32 v2, v1, 2, 1","v_lshrrev_b32 v3, 5, v1","v_lshlrev_b32 v3, 3, v3","v_lshl_add_u32 v2, v2, 5, v3","v_bfe_u32 v3, v1, 3, 1","v_add_u32 v2, v2, v3",
      "v_bfe_u32 v3, v1, 4, 1","v_and_b32 v4, 3, v1","v_lshlrev_b32 v4, 3, v4","v_lshl_add_u32 v3, v3, 5, v4","v_lshl_add_u32 v5, v2, 8, v3",
      "s_lshr_b32 s62, s22, 1","s_lshl_b32 s62, s62, 6","s_and_b32 s63, s22, 1","s_lshl_b32 s63, s63, 15","s_add_u32 s62, s62, s63","v_add_u32 v5, s62, v5")
    a("v_lshrrev_b32 v2, 3, v1","v_and_b32 v3, 7, v1","v_lshlrev_b32 v3, 4, v3","v_lshl_add_u32 v6, v2, 9, v3",
      "s_lshr_b32 s62, s22, 2","s_lshl_b32 s62, s62, 15","s_and_b32 s63, s22, 3","s_lshl_b32 s63, s63, 7","s_add_u32 s62, s62, s63",f"s_add_u32 s62, s62, {WS_P+W2ROW*512}")
    a("s_waitcnt vmcnt(0)","s_barrier")
    for s8 in range(8):
        for u in range(2):
            lam=64*(s8>>2)+16*((s8>>1)&1)+2*(s8&1)+4*u
            a(f"ds_read_b64_tr_b16 v[{20+4*s8+2*u}:{21+4*s8+2*u}], v5 offset:{lam*256}")
    a("v_lshlrev_b32 v10, 16, v8","v_and_b32 v11, 0xffff0000, v8","v_lshlrev_b32 v12, 16, v9","v_and_b32 v13, 0xffff0000, v9",
      "v_max3_f32 v10, |v10|, |v11|, |v12|","v_max_f32 v10, v10, |v13|" if False else "v_max3_f32 v10, v10, |v13|, |v13|")
    dpp_scan(a,"v_max_u32",[10])
    a(f"v_mul_f32 v10, {f32(LOG2E*1.01)}, v10")
    a("s_waitcnt lgkmcnt(0)")
    for s8 in range(8):
        a(f"buffer_store_dwordx4 v[{20+4*s8}:{23+4*s8}], v6, s[28:31], s62 offen","s_add_u32 s62, s62, 4096")
    a("s_cmp_ge_u32 s22, 4","s_cbranch_scc1 K1_END")
    a("v_mov_b32 v12, 0","v_mov_b32 v13, 0","v_lshlrev_b32 v2, 3, v1",f"s_mov_b32 s63, {WS_P+ZROW*512}","buffer_store_dwordx2 v[12:13], v2, s[28:31], s63 offen")
    a("s_lshl_b32 s62, s22, 2",f"s_add_u32 s62, s62, {WS_C+3072}","s_mov_b32 exec_lo, 0","s_brev_b32 exec_hi, 1","buffer_store_dword v10, v12, s[28:31], s62 offen")
    a("K1_END:","s_endpgm")
    return a.text(), 116, (102 if STAMP else 80)

NSLOT=2560
LCH=0; LSRC=NSLOT; LZ=LSRC+NSLOT*4; LCNT=LZ+16; LDEG=LZ+528; LB=LZ+1536
LREC=LZ+1600; LQI=LREC+NSLOT*16; LRING=LQI+4*50*192; K2_LDS=LRING+16*SLOT
LXT=LRING; LARR=LRING+16384
ZOFF=49*192
THR=30.0
def gen_k2():
    r=regs(); a=A()
    vENT=r.top; vDEG=r.top+1; vB2=r.top+2
    QB=160; QA=192; RK=r.N[0]; PMR=r.H[1]; WM=r.AX; WMP=WM; B1R=r.OH
    T=r.E; U=r.AF[0]; EP=[]
    a("mpnn_k2_kernel:")
    a("s_cmp_ge_u32 s2, 256","s_cbranch_scc1 K2_END")
    stamp(a,3)
    a("s_load_dwordx2 s[22:23], s[0:1], 80","s_load_dwordx16 s[4:19], s[0:1], 0","s_load_dwordx2 s[20:21], s[0:1], 64")
    a("s_and_b32 s84, s2, 7","s_lshl_b32 s84, s84, 5","s_lshr_b32 s2, s2, 3","s_or_b32 s2, s2, s84")
    a("v_lshrrev_b32 v2, 1, v0","s_lshl_b32 s84, s2, 2","v_lshl_add_u32 v3, v2, 10, s84")
    a("v_and_b32 v1, 63, v0","v_lshrrev_b32 v2, 6, v0",f"s_mov_b32 s38, {NCH*1024}","s_mov_b32 s39, 0x20000","v_readfirstlane_b32 s24, v2")
    a("s_waitcnt lgkmcnt(0)")
    a(f"s_add_u32 s36, s22, {WS_O}","s_addc_u32 s37, s23, 0","s_and_b32 s37, s37, 0xffff")
    a(f"buffer_load_dword v{vENT}, v3, s[36:39], 0 offen")
    a(f"s_mul_i32 s27, s2, {SM}",f"s_add_u32 s28, s27, {SM+SA}",f"s_add_u32 s27, s27, {SA}","s_lshr_b32 s27, s27, 13","s_lshr_b32 s28, s28, 13","s_sub_u32 s28, s28, s27")
    a("s_lshr_b32 s25, s24, 2","s_and_b32 s26, s24, 3","s_mov_b32 s29, 0","s_mov_b32 s31, 0")
    srd(a,32,22,23,WS_SIZE)
    srd(a,52,4,5,N*256)
    srd(a,64,18,19,256)
    a("s_lshl_b32 s86, s26, 7","s_add_u32 s48, s22, s86","s_addc_u32 s49, s23, 0","s_and_b32 s49, s49, 0xffff","s_or_b32 s49, s49, 0x100000","s_mov_b32 s50, -1","s_mov_b32 s51, 0x800000")
    a("s_mov_b32 s40, 1.0","s_mov_b32 s41, 1.0",f"s_mul_i32 s44, s24, {2*SLOT}",f"s_add_u32 s44, s44, {LRING}",f"s_add_u32 s45, s44, {SLOT}")
    a(f"v_mov_b32 v{vDEG}, 0")
    a("K2_PASS:")
    Z=U
    for i in range(4): a(f"v_mov_b32 v{Z+i}, 0")
    a(f"v_lshlrev_b32 v{T}, 4, v0",f"v_lshlrev_b32 v{T+1}, 2, v1",f"ds_write_b32 v{T+1}, v{Z} offset:{LCNT}")
    for k in range(5): a(f"ds_write_b128 v{T}, v[{Z}:{Z+3}] offset:{LREC+8192*k}")
    a(f"v_and_b32 v{T+1}, 7, v0",f"v_lshlrev_b32 v{T+1}, 7, v{T+1}",f"v_sub_u32 v{U+4}, {ZROW*512+BIAS}, v{T+1}")
    for j in range(1,4): a(f"v_subrev_u32 v{U+4+j}, {DPAD*j}, v{U+4}")
    a(f"ds_write_b128 v{T}, v[{U+4}:{U+7}] offset:{LSRC}")
    a(f"v_and_b32 v{T+1}, 127, v0",f"v_lshlrev_b32 v{T+2}, 4, v{T+1}",f"ds_write_b128 v{T+2}, v[{U+4}:{U+7}] offset:{LSRC+8192}")
    a(f"v_mov_b32 v{T+3}, {ZOFF}",f"v_lshlrev_b32 v{T+2}, 2, v0",f"ds_write_b32 v{T+2}, v{T+3} offset:{LCH}",
      f"v_lshlrev_b32 v{T+1}, 2, v{T+1}",f"ds_write_b32 v{T+1}, v{T+3} offset:{LCH+2048}")
    a(f"v_and_b32 v{T+1}, 1, v1",f"v_lshrrev_b32 v{T+4}, 1, v0",f"v_mul_u32_u24 v{T+4}, {CH}, v{T+4}",
      f"s_lshl_b32 s87, s24, 10",f"s_add_u32 s87, s87, {LARR}","s_lshl_b32 s88, s31, 2","s_sub_u32 s88, s87, s88","s_add_u32 s86, s31, 256",
      f"v_add_u32 v{T+10}, s31, v1",f"v_lshl_add_u32 v{T+14}, v1, 2, s87",f"v_sub_u32 v{T+15}, 1, v{T+1}")
    for k in range(1,4): a(f"v_add_u32 v{T+10+k}, {64*k}, v{T+10}")
    stamp(a,4)
    a("s_waitcnt vmcnt(0)")
    stamp(a,5)
    a(f"v_lshrrev_b32 v{T}, 16, v{vENT}",f"v_mul_u32_u24 v{T+2}, v{T}, v{T+15}",f"v_and_b32 v{T+5}, 0xffff, v{vENT}",f"v_add_u32 v{T+4}, v{T+4}, v{T+5}")
    dpp_scan(a,"v_add_u32",[T+2])
    a(f"v_sub_u32 v{T+3}, v{T+2}, v{T}",f"v_readlane_b32 s30, v{T+2}, 63",f"v_sub_u32 v{T+4}, v{T+4}, v{T+3}",
      f"v_max_u32 v{T+3}, s31, v{T+3}",f"v_add_u32 v{T+3}, v{T+3}, v{T+1}",f"v_min_u32 v{T+2}, s86, v{T+2}",
      f"v_lshl_add_u32 v{T+5}, v{T+3}, 2, s88",f"v_sub_u32 v{T+2}, v{T+2}, v{T+3}")
    a("K2_EXP:")
    for it in range(8): a(f"v_cmpx_lt_i32 vcc, {2*it}, v{T+2}",f"ds_write_b32 v{T+5}, v{T+4} offset:{8*it}")
    a(f"v_cmpx_lt_i32 vcc, 16, v{T+2}","s_cbranch_execz K2_EXPD",f"v_subrev_u32 v{T+2}, 16, v{T+2}",f"v_add_u32 v{T+5}, 64, v{T+5}","s_branch K2_EXP","K2_EXPD:","s_mov_b64 exec, -1")
    for k in range(4): a(f"ds_read_b32 v{T+6+k}, v{T+14} offset:{256*k}")
    a(f"v_bfrev_b32 v{T+4}, 2",f"s_mov_b32 s86, {WS_R}")
    for k in range(4): a(f"v_cmp_gt_u32 s[{72+2*k}:{73+2*k}], s30, v{T+10+k}")
    for k in range(4):
        a(f"s_waitcnt lgkmcnt({3-k})",f"v_add_u32 v{T+10+k}, v{T+10+k}, v{T+6+k}",f"v_mul_u32_u24 v{T+10+k}, 12, v{T+10+k}",f"v_cndmask_b32 v{T+10+k}, v{T+4}, v{T+10+k}, s[{72+2*k}:{73+2*k}]",
          f"buffer_load_dwordx3 v[{RK+4*k}:{RK+4*k+2}], v{T+10+k}, s[32:35], s86 offen")
    stamp(a,6)
    a("s_barrier")
    a("s_cmp_lg_u32 s29, 0","s_cbranch_scc1 K2_NOBULK")
    a("v_lshrrev_b32 v2, 4, v1","s_and_b32 s86, s24, 1","s_lshl_b32 s86, s86, 3","v_add_u32 v3, s86, v2",f"v_and_b32 v{T}, 15, v1",f"v_xor_b32 v3, v3, v{T}","v_lshlrev_b32 v3, 4, v3","v_lshl_add_u32 v3, v2, 8, v3","v_xor_b32 v2, 64, v3")
    a("s_lshl_b32 s86, s24, 11","s_lshl_b32 s87, s27, 8","s_add_u32 s87, s87, s86",f"s_add_u32 m0, s86, {LXT}","s_lshl_b32 s86, s24, 13")
    a("buffer_load_dwordx4 v3, s[52:55], s87 offen lds","buffer_load_dwordx4 v2, s[52:55], s87 offen offset:1024 lds")
    a("v_lshlrev_b32 v2, 4, v1",f"s_add_u32 s86, s86, {WS_W1}","s_add_u32 s87, s86, 4096")
    for s in range(8): a(f"buffer_load_dwordx4 v[{QB+4*s}:{QB+4*s+3}], v2, s[32:35], s{86+(s>>2)} offen offset:{1024*(s&3)}")
    a("v_and_b32 v3, 31, v1","v_lshlrev_b32 v2, 3, v3","s_lshl_b32 s86, s26, 9",f"s_add_u32 s86, s86, {WS_C}")
    for ct in range(2): a(f"buffer_load_dwordx2 v[{r.BX[ct]}:{r.BX[ct]+1}], v2, s[32:35], s86 offen offset:{256*ct}")
    a("v_lshlrev_b32 v2, 2, v3","s_lshl_b32 s86, s24, 7",f"s_add_u32 s86, s86, {WS_C+2048}",f"buffer_load_dword v{B1R}, v2, s[32:35], s86 offen")
    a("v_lshlrev_b32 v2, 1, v3","s_lshl_b32 s86, s26, 6",f"buffer_load_ushort v{vB2}, v2, s[64:67], s86 offen")
    a(f"s_mov_b32 s86, {WS_C+3072}",f"buffer_load_dwordx4 v[{WM}:{WM+3}], off, s[32:35], s86")
    a(f"v_min_u32 v2, {NPW*2-1}, v0","v_lshlrev_b32 v2, 4, v2",f"s_mov_b32 s86, {WS_PM}",f"buffer_load_dwordx4 v[{PMR}:{PMR+3}], v2, s[32:35], s86 offen")
    for i in range(4): a(f"v_mov_b32 v{Z+i}, 0")
    a(f"v_mov_b32 v{T+6}, 0x3f80")
    for rnd in range(2):
        if rnd==0: a(f"v_lshrrev_b32 v{T+1}, 2, v0")
        else: a(f"v_add_u32 v{T+1}, 128, v{T+7}",f"v_min_u32 v{T+1}, 199, v{T+1}")
        a(f"v_mov_b32 v{T+7}, v{T+1}",f"v_and_b32 v{T+2}, 3, v0",
          f"v_mul_u32_u24 v{T+3}, 1311, v{T+1}",f"v_lshrrev_b32 v{T+3}, 16, v{T+3}",f"v_mul_u32_u24 v{T+3}, 50, v{T+3}",f"v_sub_u32 v{T+3}, v{T+1}, v{T+3}",
          f"v_mul_u32_u24 v{T+1}, 192, v{T+1}",f"v_lshl_add_u32 v{T+1}, v{T+2}, 4, v{T+1}",
          f"ds_write_b128 v{T+1}, v[{Z}:{Z+3}] offset:{LQI+128}",
          f"v_subrev_u32 v{T+4}, 25, v{T+3}",f"v_min_u32 v{T+4}, v{T+4}, v{T+3}",
          f"v_lshlrev_b32 v{T+2}, 3, v{T+2}",f"v_sub_u32 v{T+4}, v{T+4}, v{T+2}",f"v_lshl_add_u32 v{T+1}, v{T+4}, 1, v{T+1}",
          f"v_cmpx_gt_u32 vcc, 8, v{T+4}",f"v_cmpx_ne_u32 vcc, 49, v{T+3}",
          f"ds_write_b16 v{T+1}, v{T+6} offset:{LQI+128}","s_mov_b64 exec, -1")
    a(f"v_bfe_u32 v{T}, v0, 3, 2",f"v_mul_u32_u24 v{T}, 9600, v{T}",f"v_and_b32 v{T+1}, 7, v0",f"v_lshl_add_u32 v{T}, v{T+1}, 4, v{T}",f"ds_write_b128 v{T}, v[{Z}:{Z+3}] offset:{LQI+ZOFF}")
    a(f"v_and_b32 v{T}, 3, v0",f"v_lshlrev_b32 v{T}, 9, v{T}",f"ds_write_b128 v{T}, v[{Z}:{Z+3}] offset:{LZ}")
    a(f"v_and_b32 v{T}, 31, v1",f"v_lshrrev_b32 v{T+1}, 5, v1",f"v_lshlrev_b32 v{T+1}, 3, v{T+1}",f"v_sub_u32 v{T}, v{T}, v{T+1}",
      f"v_and_b32 v{T+1}, 1, v1",f"v_lshlrev_b32 v{T+1}, 4, v{T+1}",f"v_lshlrev_b32 v{T+1}, v{T+1}, v{T+6}",f"v_ashrrev_i32 v{T}, 1, v{T}")
    for q in range(4):
        a(f"v_cmp_eq_u32 vcc, {q}, v{T}",f"v_cmp_eq_u32 s[84:85], {8+q}, v{T}","s_nop 0",f"v_cndmask_b32 v{r.BS[0]+q}, 0, v{T+1}, vcc",f"v_cndmask_b32 v{r.BS[1]+q}, 0, v{T+1}, s[84:85]")
    a(f"v_and_b32 v{T}, 1, v1",f"v_bfe_u32 v{T+1}, v1, 4, 1",f"v_lshl_or_b32 v{T}, v{T+1}, 1, v{T}",f"v_bfe_u32 v{T+1}, v1, 2, 1",f"v_lshl_or_b32 v{T}, v{T+1}, 2, v{T}",
      f"v_bfe_u32 v{T+2}, v1, 1, 1",f"v_bfe_u32 v{T+3}, v1, 3, 1",f"v_lshl_or_b32 v{T+2}, v{T+3}, 1, v{T+2}",
      f"v_mul_u32_u24 v{T+3}, {DPAD}, v{T+2}",f"v_lshl_add_u32 v{T+3}, v{T}, 7, v{T+3}",f"v_lshrrev_b32 v{T+4}, 5, v1",f"v_lshl_add_u32 v{T+3}, v{T+4}, 4, v{T+3}",f"v_add_u32 v{r.aA}, s44, v{T+3}",
      f"v_lshl_add_u32 v2, v{T}, 2, v{T+2}","v_lshlrev_b32 v2, 4, v2",
      f"v_cmp_eq_u32 s[42:43], v{T+1}, v{T+4}",f"v_mov_b32 v{T+5}, 1024","s_mul_i32 s86, s26, 9600",f"v_cndmask_b32 v{r.stREC}, 0, v{T+5}, s[42:43]")
    a(f"v_bfe_u32 v{T}, v1, 4, 1",f"v_and_b32 v{T+1}, 3, v1",f"v_lshlrev_b32 v{T+1}, 3, v{T+1}",f"v_lshl_add_u32 v{T}, v{T}, 5, v{T+1}",f"s_add_u32 s86, s86, {LQI}",f"v_add_u32 v{r.cQ}, s86, v{T}")
    for i in range(16): a(f"v_pk_mov_b32 v[{r.S[0]+2*i}:{r.S[0]+2*i+1}], v[{Z}:{Z+1}], v[{Z}:{Z+1}]")
    stamp(a,7)
    a("s_waitcnt vmcnt(16)","s_branch K2_HIST","K2_NOBULK:",f"s_mov_b32 s86, {WS_C+3072}",f"buffer_load_dwordx4 v[{WM}:{WM+3}], off, s[32:35], s86","s_waitcnt vmcnt(0)","K2_HIST:")
    stamp(a,8)
    LD=T; RN=T+4; AD=T+8; SV=T+12
    a(f"v_mov_b32 v{U}, 1")
    for k in range(4): a(f"v_bfe_u32 v{LD+k}, v{RK+4*k+2}, 16, 6",f"v_lshlrev_b32 v{AD+k}, 2, v{LD+k}")
    for k in range(4): a(f"s_mov_b64 exec, s[{72+2*k}:{73+2*k}]",f"ds_add_rtn_u32 v{RN+k}, v{AD+k}, v{U} offset:{LCNT}")
    a("s_mov_b64 exec, -1",f"v_mov_b32 v{U+1}, {BIAS}")
    for k in range(4): a(f"v_and_b32 v{SV+k}, 0x3fff, v{RK+4*k+2}",f"v_lshl_add_u32 v{SV+k}, v{SV+k}, 9, v{U+1}",f"v_mul_u32_u24 v{LD+k}, 192, v{LD+k}")
    a(f"v_lshlrev_b32 v{U}, 2, v1")
    a(f"v_and_b32 v{U+1}, 31, v1",f"v_lshrrev_b32 v{U+2}, 5, v1",f"v_and_b32 v{U+3}, 15, v1",f"v_xor_b32 v{U+3}, v{U+2}, v{U+3}",f"v_lshlrev_b32 v{U+3}, 4, v{U+3}",f"v_lshl_add_u32 v{U+8}, v{U+1}, 8, v{U+3}")
    for s in range(1,8): a(f"v_xor_b32 v{U+8+s}, {32*s}, v{U+8}")
    for s in range(8): a(f"v_add_u32 v{U+8+s}, {LXT}, v{U+8+s}")
    a("s_waitcnt vmcnt(14) lgkmcnt(0)","s_barrier")
    stamp(a,9)
    a(f"ds_read_b32 v{U+1}, v{U} offset:{LCNT}")
    a("s_cmp_lg_u32 s29, 0","s_cbranch_scc1 K2_NOQA")
    for nb in range(2):
        for s in range(8):
            if nb==1 and s==6: break
            a(f"ds_read_b128 v[{QA+32*nb+4*s}:{QA+32*nb+4*s+3}], v{U+8+s} offset:{8192*nb}")
    a("s_waitcnt lgkmcnt(14)")
    for s in (6,7): a(f"ds_read_b128 v[{QA+32+4*s}:{QA+32+4*s+3}], v{U+8+s} offset:8192")
    a("s_branch K2_QA","K2_NOQA:","s_waitcnt lgkmcnt(0)","K2_QA:")
    a(f"v_add_u32 v{vDEG}, v{vDEG}, v{U+1}",f"v_add_u32 v{U+1}, 3, v{U+1}",f"v_lshrrev_b32 v{U+1}, 2, v{U+1}",f"v_mov_b32 v{U+2}, v{U+1}")
    dpp_scan(a,"v_add_u32",[U+2])
    a("v_cmp_lt_u32 vcc, 24, v1",f"v_readlane_b32 s86, v{U+2}, 24",f"v_readlane_b32 s87, v{U+2}, 63",f"v_sub_u32 v{U+2}, v{U+2}, v{U+1}")
    a("s_sub_u32 s87, s87, s86","s_add_u32 s87, s87, 7","s_lshr_b32 s87, s87, 3",
      "s_add_u32 s88, s86, 7","s_lshr_b32 s88, s88, 3",
      "s_add_u32 s89, s88, 3","s_lshl_b32 s90, s89, 3","s_sub_u32 s90, s90, s86")
    a(f"v_mov_b32 v{U+1}, s90",f"v_cndmask_b32 v{U+1}, 0, v{U+1}, vcc",f"v_add_lshl_u32 v{U+2}, v{U+2}, v{U+1}, 2")
    for k in range(4): a(f"ds_bpermute_b32 v{AD+k}, v{AD+k}, v{U+2}")
    a("s_cmp_eq_u32 s25, 0","s_cselect_b32 s46, s88, s87","s_cselect_b32 s91, 0, s89")
    a(f"v_mov_b32 v{U+4}, 0x3f80",f"v_mov_b32 v{U+5}, 0",f"s_movk_i32 s92, {-DPAD}","s_movk_i32 s93, -128")
    a(f"s_lshl_b32 s94, s91, 9",f"s_add_u32 s94, s94, {LREC}",f"v_add_u32 v{U}, s94, v2",f"v_mov_b32 v{U+1}, {LZ}",f"v_cndmask_b32 v{r.aREC}, v{U+1}, v{U}, s[42:43]")
    a(f"s_lshl_b32 s94, s91, 7",f"s_add_u32 s94, s94, {LSRC}",f"v_lshrrev_b32 v{U}, 3, v1",f"v_lshl_add_u32 v{r.aSRC}, v{U}, 4, s94")
    a(f"s_lshl_b32 s94, s91, 5",f"s_add_u32 s94, s94, {LCH}",f"v_bfe_u32 v{U}, v1, 2, 2",f"v_lshrrev_b32 v{U+1}, 5, v1",f"v_lshl_add_u32 v{U}, v{U+1}, 2, v{U}",f"v_lshl_add_u32 v{r.aCH}, v{U}, 2, s94")
    a("s_waitcnt vmcnt(6) lgkmcnt(0)")
    QM=[f"{MF} v[{r.Y[nb]}:{r.Y[nb]+15}], v[{QA+32*nb+4*s}:{QA+32*nb+4*s+3}], v[{QB+4*s}:{QB+4*s+3}], "+("0" if s==0 else f"v[{r.Y[nb]}:{r.Y[nb]+15}]") for s in range(8) for nb in range(2)]
    for k in range(4):
        sl=AD+k
        a(QM[2*k],f"v_add_u32 v{sl}, v{sl}, v{RN+k}",
          f"v_bfe_u32 v{U+6}, v{sl}, 2, 3",f"v_and_b32 v{U+7}, 3, v{sl}",f"v_mad_i32_i24 v{SV+k}, v{U+6}, s93, v{SV+k}",f"v_mad_i32_i24 v{SV+k}, v{U+7}, s92, v{SV+k}",
          f"v_cmp_eq_u32 vcc, 0, v{U+7}",QM[2*k+1],
          f"v_lshlrev_b32 v{U+7}, 2, v{sl}",f"v_and_b32 v{U+6}, 48, v{U+7}",f"v_lshlrev_b64 v[{RK+4*k+2}:{RK+4*k+3}], v{U+6}, v[{U+4}:{U+5}]",f"v_lshlrev_b32 v{U+6}, 4, v{sl}",
          f"s_mov_b64 exec, s[{72+2*k}:{73+2*k}]",
          f"ds_write_b128 v{U+6}, v[{RK+4*k}:{RK+4*k+3}] offset:{LREC}",f"ds_write_b32 v{U+7}, v{SV+k} offset:{LSRC}",
          "s_and_b64 exec, exec, vcc",f"ds_write_b32 v{sl}, v{LD+k} offset:{LCH}","s_mov_b64 exec, -1")
    a("s_cmp_ge_u32 s24, 2","s_cbranch_scc1 K2_NOPS")
    a("s_cmp_eq_u32 s24, 0","s_cselect_b32 s94, s88, s87","s_cselect_b32 s95, 0, s89","s_add_u32 s94, s94, 1",
      f"v_lshrrev_b32 v{U}, 5, v1",f"v_add_u32 v{U}, s94, v{U}",f"v_and_b32 v{U}, 1, v{U}",
      f"v_and_b32 v{U+1}, 3, v1",f"v_bfe_u32 v{U+2}, v1, 2, 3",
      f"v_lshl_add_u32 v{U}, v{U}, 2, v{U+1}",f"v_lshl_add_u32 v{U}, v{U}, 3, v{U+2}",f"v_lshlrev_b32 v{U}, 9, v{U}",
      f"v_mad_i32_i24 v{U}, v{U+1}, s92, v{U}",f"v_mad_i32_i24 v{U}, v{U+2}, s93, v{U}",
      "s_add_u32 s94, s94, s95","s_lshl_b32 s94, s94, 7","s_lshl_b32 s95, s24, 15",f"s_add_u32 s95, s95, {W2ROW*512+BIAS}",f"v_add_u32 v{U}, s95, v{U}",
      f"v_lshl_add_u32 v{U+1}, v1, 2, s94",f"ds_write_b32 v{U+1}, v{U} offset:{LSRC}")
    a("K2_NOPS:")
    a("s_waitcnt lgkmcnt(0)","s_barrier")
    stamp(a,10)
    a(f"ds_read_b128 {v(r.DI,4)}, {v(r.aSRC)}",f"ds_read_b128 v[{U+8}:{U+11}], {v(r.aSRC)} offset:128",f"ds_read_b32 {v(r.chv)}, {v(r.aCH)}","s_mov_b32 m0, s44","s_waitcnt lgkmcnt(2)")
    for j in range(4): a(f"buffer_load_dwordx4 {v(r.DI+j)}, s[48:51], 0 offen offset:{DPAD*j} lds")
    EM=U+12
    a(f"v_mov_b32 v{EM}, 0","s_waitcnt vmcnt(4)")
    for k in range(4):
        a(QM[8+2*k],f"v_lshlrev_b32 v{U}, 16, v{RK+4*k}",f"v_and_b32 v{U+1}, 0xffff0000, v{RK+4*k}",f"v_lshlrev_b32 v{U+2}, 16, v{RK+4*k+1}",f"v_and_b32 v{U+3}, 0xffff0000, v{RK+4*k+1}",QM[9+2*k],
          f"v_mul_f32_e64 v{U}, |v{U}|, s80" .replace("s80",f"v{WMP}"),f"v_fma_f32 v{U}, |v{U+1}|, v{WMP+1}, v{U}",f"v_fma_f32 v{U}, |v{U+2}|, v{WMP+2}, v{U}",f"v_fma_f32 v{U}, |v{U+3}|, v{WMP+3}, v{U}",
          f"v_max_u32 v{EM}, v{EM}, v{U}")
    a("s_mov_b32 m0, s45","s_waitcnt lgkmcnt(0)")
    a("s_cmp_lg_u32 s29, 0","s_cbranch_scc1 K2_NOQW")
    a(f"s_mov_b32 s86, {f32(-LOG2E)}",f"s_lshr_b32 s88, s24, 1","s_mul_i32 s88, s88, 9600","s_and_b32 s89, s24, 1","s_lshl_b32 s89, s89, 1","s_add_u32 s88, s88, s89",f"s_add_u32 s88, s88, {LQI}",
      f"v_lshrrev_b32 v{U}, 5, v1",f"v_and_b32 v{U+1}, 31, v1",f"v_mul_u32_u24 v{U}, 768, v{U}",f"v_lshl_add_u32 v{U}, v{U+1}, 2, v{U}",f"v_add_u32 v{U}, s88, v{U}")
    a(f"v_max3_u32 v{U+13}, v{PMR}, v{PMR+1}, v{PMR+2}",f"v_max_u32 v{U+13}, v{U+13}, v{PMR+3}",f"v_mov_b32 v{U+14}, 0",f"v_lshlrev_b32 v{vB2}, 16, v{vB2}")
    for nb in range(2):
        Y=r.Y[nb]
        nreg=16 if nb==0 else 10
        for m in range(nreg//2):
            a(f"v_fma_f32 v{Y+2*m}, v{Y+2*m}, s86, v{B1R}",f"v_fma_f32 v{Y+2*m+1}, v{Y+2*m+1}, s86, v{B1R}")
            a(f"v_cvt_pk_bf16_f32 v{U+1+(m&1)}, v{Y+2*m}, v{Y+2*m+1}",f"v_max3_f32 v{U+14}, |v{Y+2*m}|, |v{Y+2*m+1}|, v{U+14}")
            i,j=(2*m)>>2,(2*m)&3
            off=(32*nb+8*i+j)*192
            if nb==1 and m==4:
                a("s_mov_b32 exec_hi, 0",f"ds_write_b16 v{U}, v{U+1+(m&1)} offset:{off}","s_mov_b32 exec_hi, -1")
            else:
                a(f"ds_write_b16 v{U}, v{U+1+(m&1)} offset:{off}",f"ds_write_b16_d16_hi v{U}, v{U+1+(m&1)} offset:{off+192}")
    a("s_branch K2_QW","K2_NOQW:",f"v_mov_b32 v{U+13}, 0",f"v_mov_b32 v{U+14}, 0","K2_QW:")
    dpp_scan(a,"v_max_u32",[EM,U+13,U+14])
    for j in range(4): a(f"buffer_load_dwordx4 v{U+8+j}, s[48:51], 0 offen offset:{DPAD*j} lds")
    a("s_add_u32 s88, s30, 255","s_lshr_b32 s88, s88, 8",f"v_mov_b32 v{U+2}, s88",f"v_mov_b32 v{U+3}, {LB}")
    a("s_mov_b32 exec_lo, 0","s_brev_b32 exec_hi, 1",f"ds_max_u32 v{U+3}, v{U+13}",f"ds_max_u32 v{U+3}, v{U+14} offset:4",f"ds_max_u32 v{U+3}, v{EM} offset:8",f"ds_max_u32 v{U+3}, v{U+2} offset:12","s_mov_b64 exec, -1")
    for i in range(4): a(f"v_mov_b32 v{r.OH+i}, 0",f"v_mov_b32 v{r.H[0]+i}, 0",f"v_mov_b32 v{r.H[1]+i}, 0")
    a(f"v_add_u32 {v(r.aQ[0])}, {v(r.chv)}, {v(r.cQ)}")
    a("s_waitcnt lgkmcnt(0)","s_barrier")
    stamp(a,11)
    a(f"ds_read_b128 v[{T}:{T+3}], v{U+3}",
      f"ds_read_b128 {v(r.AX,4)}, {v(r.aREC)}",f"ds_read_b64_tr_b16 {v(r.BX[0]+2,2)}, {v(r.aQ[0])}",f"ds_read_b64_tr_b16 {v(r.BX[1]+2,2)}, {v(r.aQ[0])} offset:64",
      f"ds_read_b128 {v(r.DI,4)}, {v(r.aSRC)} offset:256",f"ds_read_b32 {v(r.chv)}, {v(r.aCH)} offset:32","s_waitcnt vmcnt(4)")
    for q in range(4): a(f"ds_read_b128 {v(r.AF[q],4)}, {v(r.aA)} offset:{32*q}")
    a("s_mov_b32 m0, s44","s_waitcnt lgkmcnt(9)",f"v_add_f32 v{T}, v{T}, v{T+1}",f"v_add_f32 v{T}, v{T}, v{T+2}",f"v_readfirstlane_b32 s47, v{T+3}",f"v_readfirstlane_b32 s92, v{T}","s_waitcnt lgkmcnt(0)")
    a(f"{MF} {v(r.Y[0],16)}, {v(r.AF[0],4)}, {v(r.BS[0],4)}, 0",f"{MF} {v(r.Y[0],16)}, {v(r.AF[1],4)}, {v(r.BS[1],4)}, {v(r.Y[0],16)}",f"{MF} {v(r.Y[0],16)}, {v(r.AX,4)}, {v(r.BX[0],4)}, {v(r.Y[0],16)}")
    for j in range(4): a(f"buffer_load_dwordx4 {v(r.DI+j)}, s[48:51], 0 offen offset:{DPAD*j} lds")
    stamp(a,12)
    if STAMP and FINE: a("s_memtime s[100:101]","s_waitcnt lgkmcnt(0)","s_mov_b32 s4, s100","s_mov_b32 s6, s46")
    a("s_cmp_eq_u32 s46, 0","s_cbranch_scc1 K2_DONE")
    a("s_nop 4",f"s_cmp_le_u32 s92, {f32(THR)}","s_cbranch_scc0 K2_LOOP_S")
    for nm,fast in (("F",True),("S",False)):
        if nm=="F": a(".p2align 6")
        a(f"K2_LOOP_{nm}:")
        a(tile(r,0,fast))
        a("s_sub_u32 s46, s46, 1","s_cmp_eq_u32 s46, 0","s_cbranch_scc1 K2_EXITA")
        a(tile(r,1,fast))
        a("s_sub_u32 s46, s46, 1","s_cmp_lg_u32 s46, 0",f"s_cbranch_scc1 K2_LOOP_{nm}")
        a("s_branch K2_EXITB")
    a("K2_EXITA:",f"v_mov_b32 v{r.OH+2}, 0",f"v_mov_b32 v{r.OH+3}, 0","s_nop 1",f"{MF} {v(r.S[0],16)}, {v(r.H[0],4)}, {v(r.OH,4)}, {v(r.S[0],16)}")
    a("K2_EXITB:","s_nop 1",f"{MF} {v(r.S[1],16)}, {v(r.H[1],4)}, {v(r.OH,4)}, {v(r.S[1],16)}")
    a("K2_DONE:","s_setprio 0","s_add_u32 s29, s29, 1","s_add_u32 s31, s31, 256","s_cmp_lt_u32 s29, s47","s_waitcnt vmcnt(0) lgkmcnt(0)","s_cbranch_scc0 K2_EPI")
    a("s_nop 7","s_barrier","s_branch K2_PASS")
    a("K2_EPI:")
    stamp(a,13)
    if STAMP and FINE: a("s_memtime s[100:101]","s_waitcnt lgkmcnt(0)","s_sub_u32 s5, s100, s4")
    a("v_and_b32 v3, 31, v1","v_lshlrev_b32 v2, 1, v3")
    a(f"s_mov_b32 s86, {f32(-math.log(2))}",f"s_mov_b32 s87, {f32(-math.log(2))}")
    a(f"v_cvt_f32_u32 v{T}, v{vDEG}",f"v_cmp_lt_u32 vcc, 24, v1",f"v_mov_b32 v{T+1}, 7",f"v_lshrrev_b32 v{T+3}, 5, v1",f"v_cndmask_b32 v{T+1}, 0, v{T+1}, vcc",f"v_add_u32 v{T+1}, v{T+1}, v1",f"v_min_u32 v{T+1}, 63, v{T+1}",f"v_lshlrev_b32 v{T+1}, 2, v{T+1}",f"ds_write_b32 v{T+1}, v{T} offset:{LDEG}")
    a(f"s_lshl_b32 s88, s25, 5",f"v_add_u32 v{T+4}, s88, v3",f"v_mul_u32_u24 v{T+4}, 528, v{T+4}",
      f"s_lshl_b32 s88, s26, 7",f"v_lshl_add_u32 v{T+5}, v{T+3}, 5, s88",f"v_add_u32 v{T+5}, v{T+5}, v{T+4}",
      f"v_lshl_add_u32 v{T+4}, v{T+3}, 4, v{T+4}")
    for i in range(16): a(f"v_pk_mul_f32 v[{r.S[0]+2*i}:{r.S[0]+2*i+1}], v[{r.S[0]+2*i}:{r.S[0]+2*i+1}], s[86:87]")
    for i in range(16): a(f"v_cvt_pk_bf16_f32 v{r.Y[0]+i}, v{r.S[0]+2*i}, v{r.S[0]+2*i+1}")
    a(f"s_mul_i32 s88, s26, {4*SLOT}",f"s_add_u32 s88, s88, {LRING}",f"v_lshl_add_u32 v{T+6}, v1, 4, s88")
    a(f"s_lshl_b32 s88, s25, 7",f"v_lshl_add_u32 v{T+7}, v{T+3}, 4, s88")
    a("s_mul_i32 s88, s25, 25","s_add_u32 s88, s88, s27","s_lshl_b32 s88, s88, 8","s_add_u32 s68, s20, s88","s_addc_u32 s69, s21, 0","s_and_b32 s69, s69, 0xffff",
      "s_sub_u32 s88, s28, 25","s_cmp_eq_u32 s25, 0","s_cselect_b32 s88, 25, s88","s_lshl_b32 s70, s88, 8","s_mov_b32 s71, 0x20000","s_movk_i32 s89, 0x1000")
    a(f"s_lshl_b32 s88, s26, 6",f"v_lshl_add_u32 v{T+8}, v{T+3}, 10, s88",f"v_add_u32 v{T+8}, v{T+8}, v2")
    a("s_waitcnt lgkmcnt(0)","s_barrier")
    for q in range(4): a(f"ds_write_b128 v{T+5}, v[{r.Y[0]+4*q}:{r.Y[0]+4*q+3}] offset:{LREC+64*(q>>1)+16*(q&1)}")
    for i in range(4): a(f"ds_read_b128 v[{r.Y[1]+4*i}:{r.Y[1]+4*i+3}], v{T+7} offset:{LDEG+32*i}")
    for s in range(7): a(f"ds_read_b128 v[{QB+4*s}:{QB+4*s+3}], v{T+6} offset:{(s>>3)*2*SLOT+((s>>2)&1)*SLOT+(s&3)*DPAD}")
    a("s_waitcnt lgkmcnt(11)","s_barrier")
    stamp(a,14)
    fr=[r.S[0]+4*i for i in range(8)]+[r.AF[i] for i in range(4)]+[r.N[0]+4*i for i in range(4)]
    for s in range(4): a(f"ds_read_b128 v[{fr[s]}:{fr[s]+3}], v{T+4} offset:{LREC+32*s}")
    a("s_waitcnt lgkmcnt(11)")
    for i in range(16): a(f"v_mul_f32 v{r.Y[1]+i}, v{r.Y[1]+i}, v{vB2}")
    a("s_nop 0")
    for s in range(16):
        n_after=0
        pend=[]
        if s+4<16: pend.append(f"ds_read_b128 v[{fr[s+4]}:{fr[s+4]+3}], v{T+4} offset:{LREC+32*(s+4)}")
        if s+7<16: q=s+7; pend.append(f"ds_read_b128 v[{QB+4*q}:{QB+4*q+3}], v{T+6} offset:{(q>>3)*2*SLOT+((q>>2)&1)*SLOT+(q&3)*DPAD}")
        EP.append(pend)
    issued=[('B',q) for q in range(7)]+[('A',q) for q in range(4)]
    for s in range(16):
        need_=max(issued.index(('A',s)),issued.index(('B',s)))
        a(f"s_waitcnt lgkmcnt({len(issued)-1-need_})",f"{MF} {v(r.Y[1],16)}, v[{fr[s]}:{fr[s]+3}], v[{QB+4*s}:{QB+4*s+3}], {v(r.Y[1],16)}")
        for x in EP[s]: a(x)
        if s+4<16: issued.append(('A',s+4))
        if s+7<16: issued.append(('B',s+7))
    a("s_nop 11")
    for m in range(8):
        i,j=(2*m)>>2,(2*m)&3
        a(f"v_cvt_pk_bf16_f32 v{r.Y[0]+m}, v{r.Y[1]+2*m}, v{r.Y[1]+2*m+1}")
        so="0" if i<2 else "s89"; off=((8*i+j)*256)&4095
        a(f"buffer_store_short v{r.Y[0]+m}, v{T+8}, s[68:71], {so} offen offset:{off}",f"buffer_store_short_d16_hi v{r.Y[0]+m}, v{T+8}, s[68:71], {so} offen offset:{off+256}")
    stamp(a,15)
    stamp_flush(a,22,1,24,list(range(3,17)))
    a("K2_END:","s_endpgm")
    return a.text(), 256, (102 if STAMP else 96)
HEADER=open('standalone__edge_featured_mpnn_mpnn__graph.s.ref').read().split('; Override')[0]
def build(fn):
    t1,v1,s1=gen_k1(); t2,v2,s2=gen_k2()
    for nm,t in (('k1',t1),('k2',t2)):
        h=hazard.check(t); print(nm, "\n".join(h) or "no hazards")
    out=HEADER+f"; @launch kernel=mpnn_k1_kernel grid=({K1_GRID},1,1) block=(512,1,1) lds={K1_LDS}\n; @launch kernel=mpnn_k2_kernel grid=(256,1,1) block=(512,1,1) lds={K2_LDS}\n"
    out+='.amdgcn_target "amdgcn-amd-amdhsa--gfx950"\n.text\n'
    for nm,t in (('mpnn_k1_kernel',t1),('mpnn_k2_kernel',t2)):
        out+=f".globl {nm}\n.p2align 8\n.type {nm},@function\n"+t
    out+=kd('mpnn_k1_kernel',v1,s1)+kd('mpnn_k2_kernel',v2,s2)
    open(fn,'w').write(out)
    print("LDS k2",K2_LDS)
if __name__=='__main__':
    if len(sys.argv)>2 and 'stamp' in sys.argv[2]: STAMP=True
    for o in sys.argv[3:]:
        k,val=o.split('=',1); globals()[k]=eval(val)
    build(sys.argv[1] if len(sys.argv)>1 else 'standalone__edge_featured_mpnn_mpnn__graph.s')
```

```python
import sys, struct, math
from mainloop import *
import hazard
def f32(x): return "0x%08x" % struct.unpack('<I',struct.pack('<f',x))[0]
LOG2E=math.log2(math.e)
N=12500; E=400000
NCH=250; CH=1600
NPW=196
K1_GRID=NCH+NPW+2
BIAS=4096
WS_P=BIAS; ZROW=12500; W2ROW=12504
WS_R=8<<20; WS_O=14<<20; WS_W1=15<<20; WS_PM=(15<<20)+(1<<17); WS_C=WS_PM+8192; WS_SIZE=16<<20
BM=21475; SM=399997; SA=8191
class A:
    def __init__(s): s.l=[]
    def __call__(s,*xs):
        for x in xs:
            if isinstance(x,(list,tuple)): s(*x); continue
            for y in x.split('\n'):
                y=y.strip()
                if y: s.l.append(y if y.endswith(':') else '    '+y)
    def text(s): return "\n".join(s.l)+"\n"
def srd(a,d,lo,hi,size,off=None,w3=0x20000,stride=0):
    if off is None:
        a(f"s_mov_b32 s{d}, s{lo}"); a(f"s_and_b32 s{d+1}, s{hi}, 0xffff")
    else:
        a(f"s_add_u32 s{d}, s{lo}, {off}"); a(f"s_addc_u32 s{d+1}, s{hi}, 0"); a(f"s_and_b32 s{d+1}, s{d+1}, 0xffff")
    if stride: a(f"s_or_b32 s{d+1}, s{d+1}, {stride<<16}")
    a(f"s_mov_b32 s{d+2}, {size}"); a(f"s_mov_b32 s{d+3}, {hex(w3)}")
def dpp_scan(a, op, regs_, zero_fill=True):
    steps=["row_shr:1 row_mask:0xf bank_mask:0xf bound_ctrl:0","row_shr:2 row_mask:0xf bank_mask:0xf bound_ctrl:0","row_shr:4 row_mask:0xf bank_mask:0xf bound_ctrl:0","row_shr:8 row_mask:0xf bank_mask:0xf bound_ctrl:0",
           "row_bcast:15 row_mask:0xa bank_mask:0xf","row_bcast:31 row_mask:0xc bank_mask:0xf"]
    for st in steps:
        if len(regs_)<3: a(f"s_nop {2-len(regs_)}") if len(regs_)<2 else a("s_nop 0")
        for r_ in regs_: a(f"{op}_dpp v{r_}, v{r_}, v{r_} {st}")
def kd(name, vgpr, sgpr):
    return f""".section .rodata,"a"
.p2align 6
.amdhsa_kernel {name}
  .amdhsa_next_free_vgpr {vgpr}
  .amdhsa_next_free_sgpr {sgpr}
  .amdhsa_accum_offset {(vgpr+3)//4*4}
  .amdhsa_group_segment_fixed_size 0
  .amdhsa_kernarg_size 88
  .amdhsa_user_sgpr_count 2
  .amdhsa_user_sgpr_kernarg_segment_ptr 1
  .amdhsa_system_sgpr_workgroup_id_x 1
.end_amdhsa_kernel
"""
STAMP=False
STF=''
NOST=False
FINE=False
NOREC=False
WS_ST=24<<20
def stamp(a, sreg):
    if not STAMP: return
    a("s_memrealtime s[100:101]","s_waitcnt lgkmcnt(0)",f"s_mov_b32 s{sreg}, s100")
DBGST=False
SPIN=None
def dbg_flush(a, sregs):
    a("s_waitcnt vmcnt(0)")
    stamp(a, sregs[-1])
    a("s_or_b32 s100, s2, s24","s_cmp_lg_u32 s100, 0","s_cbranch_scc1 K2_END")
    a("s_load_dwordx2 s[96:97], s[0:1], 72",f"s_add_u32 s98, s22, {WS_ST+ (100*8)*64}","s_addc_u32 s99, s23, 0","s_load_dword s17, s[98:99], 0",f"s_load_dword s18, s[98:99], {(300*8)*64+16}","s_waitcnt lgkmcnt(0)")
    if SPIN:
        a(f"s_sub_u32 s19, s{SPIN[0]}, s{SPIN[1]}","s_mul_i32 s19, s19, 10","s_min_u32 s19, s19, 100000","K2_SPIN:","s_memrealtime s[100:101]","s_waitcnt lgkmcnt(0)","s_sub_u32 s100, s100, s16","s_cmp_lt_u32 s100, s19","s_cbranch_scc1 K2_SPIN")
    a("s_and_b32 s97, s97, 0xffff","s_mov_b32 s98, 256","s_mov_b32 s99, 0x20000","s_mov_b64 exec, 1","v_mov_b32 v3, 0")
    for q,sr in enumerate(sregs+[18]):
        a(f"s_sub_u32 s100, s{sr}, s17",f"v_mov_b32 v2, s100",f"buffer_store_dword v2, v3, s[96:99], 0 offen offset:{4*q}")
def stamp_flush(a, wslo, kern, sW, sregs):
    if not STAMP: return
    if DBGST and kern==1:
        dbg_flush(a,sregs); return
    a("s_waitcnt vmcnt(0)")
    stamp(a, sregs[-1])
    a(f"s_add_u32 s96, s{wslo}, {WS_ST}",f"s_addc_u32 s97, s{wslo+1}, 0","s_and_b32 s97, s97, 0xffff","s_mov_b32 s98, 0x800000","s_mov_b32 s99, 0x20000")
    a(f"s_add_u32 s100, s2, {kern*512}","s_lshl_b32 s100, s100, 3",f"s_add_u32 s100, s100, s{sW}","s_lshl_b32 s100, s100, 6","s_mov_b64 exec, 1","v_mov_b32 v3, 0")
    for q,sr in enumerate(sregs): a(f"v_mov_b32 v2, s{sr}",f"buffer_store_dword v2, v3, s[96:99], s100 offen offset:{4*q}")
K1_LDS=81920
def stage_w(a, sW, srdq):
    a("v_lshrrev_b32 v2, 5, v1","v_and_b32 v3, 31, v1","v_lshlrev_b32 v4, 2, v2","v_xor_b32 v3, v3, v4","v_lshlrev_b32 v3, 4, v3","v_lshl_add_u32 v3, v2, 9, v3","v_xor_b32 v4, 0x80, v3")
    a(f"s_lshl_b32 s60, s{sW}, 13","s_add_u32 s61, s60, 4096","s_mov_b32 m0, s60","s_nop 0")
    for q in range(8):
        if q==4: a("s_mov_b32 m0, s61","s_nop 0")
        a(f"buffer_load_dwordx4 v{3+(q&1)}, s[{srdq}:{srdq+3}], s{60+(q>>2)} offen offset:{1024*(q&3)} lds")
def bfrag_addr(a, sW):
    a("v_bfe_u32 v2, v1, 2, 2",
      "v_lshrrev_b32 v3, 5, v1",
      "v_lshl_add_u32 v3, v3, 3, v2",
      "v_bfe_u32 v4, v1, 4, 1","v_bfe_u32 v5, v1, 1, 1","v_lshl_add_u32 v4, v4, 1, v5",
      f"s_and_b32 s62, s{sW}, 3","s_lshl_b32 s62, s62, 3","v_add_u32 v4, s62, v4",
      "v_lshlrev_b32 v2, 2, v2","v_xor_b32 v4, v4, v2",
      "v_lshlrev_b32 v4, 4, v4","v_lshl_add_u32 v4, v3, 9, v4",
      "v_and_b32 v2, 1, v1","v_lshl_add_u32 v5, v2, 3, v4","v_xor_b32 v6, 64, v5")
def gen_k1():
    a=A()
    a("mpnn_k1_kernel:")
    a(f"s_cmp_ge_u32 s2, {K1_GRID}","s_cbranch_scc1 K1_END")
    stamp(a,72)
    a("s_load_dwordx16 s[4:19], s[0:1], 0","s_load_dwordx2 s[20:21], s[0:1], 80")
    a("v_and_b32 v1, 63, v0","v_lshrrev_b32 v2, 6, v0","s_nop 0","v_readfirstlane_b32 s22, v2")
    a("s_waitcnt lgkmcnt(0)")
    a(f"s_cmp_lt_u32 s2, {NPW+2}","s_cbranch_scc1 K1_GEMM",f"s_sub_u32 s2, s2, {NPW+2}")
    a(f"s_mul_i32 s23, s2, {CH*4}")
    for d,(lo,hi) in ((24,(10,11)),(28,(8,9))):
        a(f"s_add_u32 s{d}, s{lo}, s23",f"s_addc_u32 s{d+1}, s{hi}, 0",f"s_and_b32 s{d+1}, s{d+1}, 0xffff",f"s_mov_b32 s{d+2}, {CH*4}",f"s_mov_b32 s{d+3}, 0x20000")
    a("s_lshl_b32 s23, s23, 1","s_add_u32 s32, s6, s23","s_addc_u32 s33, s7, 0","s_and_b32 s33, s33, 0xffff",f"s_mov_b32 s34, {CH*8}","s_mov_b32 s35, 0x20000")
    a(f"s_mul_i32 s23, s2, {CH*12}",f"s_add_u32 s23, s23, {WS_R}","s_add_u32 s36, s20, s23","s_addc_u32 s37, s21, 0","s_and_b32 s37, s37, 0xffff",f"s_mov_b32 s38, {0 if NOREC else CH*12}","s_mov_b32 s39, 0x20000")
    a(f"s_lshl_b32 s23, s2, 10",f"s_add_u32 s23, s23, {WS_O}","s_add_u32 s40, s20, s23","s_addc_u32 s41, s21, 0","s_and_b32 s41, s41, 0xffff","s_mov_b32 s42, 1024","s_mov_b32 s43, 0x20000")
    a("v_lshlrev_b32 v2, 4, v0","v_lshlrev_b32 v3, 5, v0")
    a("buffer_load_dwordx4 v[8:11], v2, s[24:27], 0 offen","buffer_load_dwordx4 v[12:15], v2, s[28:31], 0 offen",
      "buffer_load_dwordx4 v[16:19], v3, s[32:35], 0 offen","buffer_load_dwordx4 v[20:23], v3, s[32:35], 0 offen offset:16")
    a("v_and_b32 v4, 255, v0","v_lshlrev_b32 v4, 2, v4","v_mov_b32 v5, 0","ds_write_b32 v4, v5","v_mov_b32 v6, 1")
    a(f"v_cmp_gt_u32 s[44:45], {CH//4}, v0" if False else f"s_movk_i32 s46, {CH//4}", "v_cmp_gt_u32 s[44:45], s46, v0")
    a(f"s_mov_b32 s47, {BM}",f"s_mov_b32 s48, {SM}",f"v_mov_b32 v7, {SA}")
    a("s_waitcnt lgkmcnt(0)","s_barrier")
    a("s_mov_b64 exec, s[44:45]","s_waitcnt vmcnt(3)")
    stamp(a,73)
    for j in range(4): a(f"v_mul_u32_u24 v{24+j}, s47, v{8+j}")
    for j in range(4): a(f"v_lshrrev_b32 v{24+j}, 20, v{24+j}")
    for j in range(4): a(f"v_lshlrev_b32 v{28+j}, 2, v{24+j}")
    for j in range(4): a(f"ds_add_rtn_u32 v{32+j}, v{28+j}, v6")
    for j in range(4): a(f"v_mad_u32_u24 v{24+j}, v{24+j}, s48, v7")
    for j in range(4): a(f"v_lshrrev_b32 v{24+j}, 13, v{24+j}")
    for j in range(4): a(f"v_sub_u32 v{24+j}, v{8+j}, v{24+j}")
    a("s_waitcnt vmcnt(2)")
    for j in range(4): a(f"v_lshl_or_b32 v{24+j}, v{24+j}, 16, v{12+j}")
    a("s_mov_b64 exec, -1","v_lshlrev_b32 v4, 4, v1","s_waitcnt lgkmcnt(0)","s_barrier")
    stamp(a,74)
    a("ds_read_b128 v[36:39], v4","s_waitcnt lgkmcnt(0)")
    a("v_add_u32 v41, v36, v37","v_add_u32 v42, v41, v38","v_add_u32 v43, v42, v39","v_mov_b32 v44, v43")
    dpp_scan(a,"v_add_u32",[44])
    a("v_sub_u32 v44, v44, v43","v_add_u32 v45, v44, v36","v_add_u32 v46, v44, v41","v_add_u32 v47, v44, v42")
    a("ds_write_b128 v4, v[44:47] offset:1024")
    a("s_cmp_lg_u32 s22, 7","s_cbranch_scc1 K1_P1")
    for j in range(4): a(f"v_lshl_or_b32 v{48+j}, v{36+j}, 16, v{44+j}")
    a("buffer_store_dwordx4 v[48:51], v4, s[40:43], 0 offen")
    a("K1_P1:")
    a("s_mov_b64 exec, s[44:45]","s_waitcnt lgkmcnt(0)")
    for j in range(4): a(f"ds_read_b32 v{36+j}, v{28+j} offset:1024")
    a("v_mov_b32 v7, 2048","s_waitcnt lgkmcnt(0)")
    for j in range(4): a(f"v_add_u32 v{36+j}, v{36+j}, v{32+j}")
    for j in range(4): a(f"v_mad_u32_u24 v{36+j}, v{36+j}, 12, v7")
    a("s_waitcnt vmcnt(0)")
    for j in range(4):
        a(f"ds_write2_b32 v{36+j}, v{16+2*j}, v{17+2*j} offset0:0 offset1:1",f"ds_write_b32 v{36+j}, v{24+j} offset:8")
    a("s_mov_b64 exec, -1","s_waitcnt lgkmcnt(0)","s_barrier")
    stamp(a,75)
    for k in range(3): a(f"ds_read_b128 v[{8+4*k}:{11+4*k}], v2 offset:{2048+8192*k}")
    a("s_movk_i32 s46, 0x2000","s_movk_i32 s47, 0x4000")
    for k in range(3): a(f"s_waitcnt lgkmcnt({2-k})", f"buffer_store_dwordx4 v[{8+4*k}:{11+4*k}], v2, s[36:39], {('0','s46','s47')[k]} offen {STF}")
    if STAMP: a(f"s_add_u32 s2, s2, {NPW+2}")
    stamp_flush(a,20,0,22,[72,73,74,75,76])
    a("s_endpgm")
    a("K1_GEMM:")
    srd(a,28,20,21,WS_SIZE)
    a(f"s_cmp_lt_u32 s2, 2","s_cbranch_scc1 K1_PREP")
    srd(a,24,12,13,65536)
    srd(a,32,4,5,N*256)
    srd(a,36,20,21,(0 if NOST else N*512),off=WS_P)
    stage_w(a,22,24)
    a(f"s_sub_u32 s23, s2, 2")
    a("v_lshrrev_b32 v2, 4, v1","s_and_b32 s62, s22, 1","s_lshl_b32 s62, s62, 3","v_add_u32 v3, s62, v2","v_and_b32 v4, 15, v1","v_xor_b32 v3, v3, v4","v_lshlrev_b32 v3, 4, v3","v_lshl_add_u32 v3, v2, 8, v3","v_xor_b32 v4, 64, v3")
    a("s_lshl_b32 s60, s22, 11","s_add_u32 s61, s60, 65536","s_lshl_b32 s62, s23, 14","s_add_u32 s60, s60, s62","s_mov_b32 m0, s61","s_nop 0")
    a("buffer_load_dwordx4 v3, s[32:35], s60 offen lds","buffer_load_dwordx4 v4, s[32:35], s60 offen offset:1024 lds")
    bfrag_addr(a,22)
    a("v_and_b32 v2, 31, v1","v_lshrrev_b32 v3, 5, v1","v_and_b32 v4, 15, v1","v_xor_b32 v3, v3, v4","v_lshlrev_b32 v3, 4, v3","v_lshl_add_u32 v3, v2, 8, v3",
      "s_lshr_b32 s62, s22, 2","s_lshl_b32 s63, s62, 13","s_add_u32 s63, s63, 65536","v_add_u32 v7, s63, v3")
    for s in range(1,8): a(f"v_xor_b32 v{8+s}, {32*s}, v7")
    a("v_mov_b32 v8, v7")
    a("v_lshrrev_b32 v2, 5, v1","v_and_b32 v3, 31, v1","v_lshlrev_b32 v3, 2, v3","v_lshl_add_u32 v16, v2, 11, v3",
      "s_and_b32 s63, s22, 3","s_lshl_b32 s63, s63, 7","s_lshl_b32 s64, s23, 15","s_lshl_b32 s62, s62, 14","s_add_u32 s64, s64, s62","s_add_u32 s64, s64, s63",
      "s_add_u32 s65, s64, 4096","s_add_u32 s66, s64, 8192","s_add_u32 s67, s64, 12288")
    a(f"s_mov_b32 s70, {f32(-LOG2E)}",f"s_mov_b32 s71, {f32(-LOG2E)}")
    a("s_waitcnt vmcnt(0)","s_barrier")
    stamp(a,73)
    AFR=20; BFR=52; ACC=84
    for s in range(8):
        a(f"ds_read_b128 v[{AFR+4*s}:{AFR+4*s+3}], v{8+s}")
        for tt in range(2):
            for u in range(2):
                b=BFR+8*(s%4)+4*tt+2*u
                a(f"ds_read_b64_tr_b16 v[{b}:{b+1}], v{5+tt} offset:{(16*s+4*u)*512}")
        if s>=2:
            q=s-2
            a("s_waitcnt lgkmcnt(10)")
            for tt in range(2): a(f"{MF} v[{ACC+16*tt}:{ACC+16*tt+15}], v[{AFR+4*q}:{AFR+4*q+3}], v[{BFR+8*(q%4)+4*tt}:{BFR+8*(q%4)+4*tt+3}], "+("0" if q==0 else f"v[{ACC+16*tt}:{ACC+16*tt+15}]"))
    for q in (6,7):
        a(f"s_waitcnt lgkmcnt({5*(7-q)})")
        for tt in range(2): a(f"{MF} v[{ACC+16*tt}:{ACC+16*tt+15}], v[{AFR+4*q}:{AFR+4*q+3}], v[{BFR+8*(q%4)+4*tt}:{BFR+8*(q%4)+4*tt+3}], v[{ACC+16*tt}:{ACC+16*tt+15}]")
    a("v_mov_b32 v17, 0","s_nop 10")
    stamp(a,74)
    for i in range(16): a(f"v_pk_mul_f32 v[{ACC+2*i}:{ACC+2*i+1}], v[{ACC+2*i}:{ACC+2*i+1}], s[70:71]")
    for i in range(16):
        a(f"v_cvt_pk_bf16_f32 v{20+i}, v{ACC+i}, v{ACC+16+i}", f"v_max3_f32 v17, |v{ACC+i}|, |v{ACC+16+i}|, v17")
        a(f"buffer_store_dword v{20+i}, v16, s[36:39], s{64+(i>>2)} offen offset:{512*(i&3)} {STF}")
    dpp_scan(a,"v_max_u32",[17])
    a("s_lshl_b32 s62, s23, 3","s_add_u32 s62, s62, s22","s_lshl_b32 s62, s62, 2",f"s_add_u32 s62, s62, {WS_PM}")
    a("v_mov_b32 v2, 0","s_mov_b32 exec_lo, 0","s_brev_b32 exec_hi, 1","buffer_store_dword v17, v2, s[28:31], s62 offen")
    stamp(a,75)
    stamp_flush(a,20,0,22,[72,73,74,75,76])
    a("s_endpgm")
    a("K1_PREP:")
    a(f"s_cmp_eq_u32 s2, 1","s_cbranch_scc1 K1_PREP2")
    srd(a,24,12,13,65536,off=65536)
    stage_w(a,22,24)
    bfrag_addr(a,22)
    a("s_lshr_b32 s62, s22, 2","s_lshl_b32 s63, s62, 6","v_xor_b32 v5, s63, v5")
    a("s_and_b32 s63, s22, 3","s_lshl_b32 s63, s63, 1","s_add_u32 s63, s63, s62","s_lshl_b32 s63, s63, 13",f"s_add_u32 s63, s63, {WS_W1}","s_add_u32 s64, s63, 4096")
    srd(a,32,12,13,260*512); srd(a,36,14,15,512)
    a("v_and_b32 v8, 255, v0","v_lshrrev_b32 v2, 6, v8","v_bfe_u32 v3, v8, 5, 1","v_lshlrev_b32 v2, 7, v2","v_lshl_add_u32 v2, v3, 5, v2","v_and_b32 v3, 1, v8","v_lshl_add_u32 v2, v3, 6, v2","v_bfe_u32 v3, v8, 1, 4","v_lshl_add_u32 v2, v3, 1, v2",f"s_mov_b32 s65, {256*512}")
    for k in range(4): a(f"buffer_load_ushort v{10+k}, v2, s[32:35], s65 offen offset:{512*k}")
    a("v_lshlrev_b32 v2, 1, v8","buffer_load_ushort v14, v2, s[36:39], 0 offen")
    a("v_lshlrev_b32 v7, 4, v1","s_waitcnt vmcnt(0)","s_barrier")
    for k in range(5): a(f"v_lshlrev_b32 v{10+k}, 16, v{10+k}",f"v_mul_f32 v{10+k}, {f32(-LOG2E)}, v{10+k}")
    a("v_cvt_pk_bf16_f32 v10, v10, v11","v_cvt_pk_bf16_f32 v11, v12, v13","v_lshlrev_b32 v2, 3, v8","v_lshlrev_b32 v3, 2, v8",f"s_mov_b32 s65, {WS_C}")
    a("buffer_store_dwordx2 v[10:11], v2, s[28:31], s65 offen","buffer_store_dword v14, v3, s[28:31], s65 offen offset:2048")
    for s in range(8):
        for u in range(2): a(f"ds_read_b64_tr_b16 v[{20+4*s+2*u}:{21+4*s+2*u}], v5 offset:{(16*s+4*u)*512}")
    a("s_waitcnt lgkmcnt(0)")
    for s in range(8): a(f"buffer_store_dwordx4 v[{20+4*s}:{23+4*s}], v7, s[28:31], s{63+(s>>2)} offen offset:{1024*(s&3)}")
    a("s_endpgm")
    a("K1_PREP2:")
    srd(a,24,16,17,65536)
    srd(a,32,12,13,260*512)
    a("v_lshlrev_b32 v7, 4, v1","s_lshl_b32 s60, s22, 13","s_add_u32 s61, s60, 4096","s_mov_b32 m0, s60","s_nop 0")
    for q in range(8):
        if q==4: a("s_mov_b32 m0, s61","s_nop 0")
        a(f"buffer_load_dwordx4 v7, s[24:27], s{60+(q>>2)} offen offset:{1024*(q&3)} lds")
    a("s_and_b32 s62, s22, 3","s_lshl_b32 s62, s62, 9",f"s_add_u32 s62, s62, {256*512}","v_lshlrev_b32 v2, 3, v1","buffer_load_dwordx2 v[8:9], v2, s[32:35], s62 offen")
    a("v_bfe_u32 v2, v1, 2, 1","v_lshrrev_b32 v3, 5, v1","v_lshlrev_b32 v3, 3, v3","v_lshl_add_u32 v2, v2, 5, v3","v_bfe_u32 v3, v1, 3, 1","v_add_u32 v2, v2, v3",
      "v_bfe_u32 v3, v1, 4, 1","v_and_b32 v4, 3, v1","v_lshlrev_b32 v4, 3, v4","v_lshl_add_u32 v3, v3, 5, v4","v_lshl_add_u32 v5, v2, 8, v3",
      "s_lshr_b32 s62, s22, 1","s_lshl_b32 s62, s62, 6","s_and_b32 s63, s22, 1","s_lshl_b32 s63, s63, 15","s_add_u32 s62, s62, s63","v_add_u32 v5, s62, v5")
    a("v_lshrrev_b32 v2, 3, v1","v_and_b32 v3, 7, v1","v_lshlrev_b32 v3, 4, v3","v_lshl_add_u32 v6, v2, 9, v3",
      "s_lshr_b32 s62, s22, 2","s_lshl_b32 s62, s62, 15","s_and_b32 s63, s22, 3","s_lshl_b32 s63, s63, 7","s_add_u32 s62, s62, s63",f"s_add_u32 s62, s62, {WS_P+W2ROW*512}")
    a("s_waitcnt vmcnt(0)","s_barrier")
    for s8 in range(8):
        for u in range(2):
            lam=64*(s8>>2)+16*((s8>>1)&1)+2*(s8&1)+4*u
            a(f"ds_read_b64_tr_b16 v[{20+4*s8+2*u}:{21+4*s8+2*u}], v5 offset:{lam*256}")
    a("v_lshlrev_b32 v10, 16, v8","v_and_b32 v11, 0xffff0000, v8","v_lshlrev_b32 v12, 16, v9","v_and_b32 v13, 0xffff0000, v9",
      "v_max3_f32 v10, |v10|, |v11|, |v12|","v_max_f32 v10, v10, |v13|" if False else "v_max3_f32 v10, v10, |v13|, |v13|")
    dpp_scan(a,"v_max_u32",[10])
    a(f"v_mul_f32 v10, {f32(LOG2E*1.01)}, v10")
    a("s_waitcnt lgkmcnt(0)")
    for s8 in range(8):
        a(f"buffer_store_dwordx4 v[{20+4*s8}:{23+4*s8}], v6, s[28:31], s62 offen","s_add_u32 s62, s62, 4096")
    a("s_cmp_ge_u32 s22, 4","s_cbranch_scc1 K1_END")
    a("v_mov_b32 v12, 0","v_mov_b32 v13, 0","v_lshlrev_b32 v2, 3, v1",f"s_mov_b32 s63, {WS_P+ZROW*512}","buffer_store_dwordx2 v[12:13], v2, s[28:31], s63 offen")
    a("s_lshl_b32 s62, s22, 2",f"s_add_u32 s62, s62, {WS_C+3072}","s_mov_b32 exec_lo, 0","s_brev_b32 exec_hi, 1","buffer_store_dword v10, v12, s[28:31], s62 offen")
    a("K1_END:","s_endpgm")
    return a.text(), 116, (102 if STAMP else 80)

NSLOT=2560
LCH=0; LSRC=NSLOT; LZ=LSRC+NSLOT*4; LCNT=LZ+16; LDEG=LZ+528; LB=LZ+1536
LREC=LZ+1600; LQI=LREC+NSLOT*16; LRING=LQI+4*50*192; K2_LDS=LRING+16*SLOT
LXT=LRING; LARR=LRING+16384
ZOFF=49*192
THR=30.0
def gen_k2():
    r=regs(); a=A()
    vENT=r.top; vDEG=r.top+1; vB2=r.top+2
    QB=160; QA=192; RK=r.N[0]; PMR=r.H[1]; WM=r.AX; WMP=WM; B1R=r.OH
    T=r.E; U=r.AF[0]; EP=[]
    a("mpnn_k2_kernel:")
    a("s_cmp_ge_u32 s2, 256","s_cbranch_scc1 K2_END")
    stamp(a,3)
    a("s_load_dwordx2 s[22:23], s[0:1], 80","s_load_dwordx16 s[4:19], s[0:1], 0","s_load_dwordx2 s[20:21], s[0:1], 64")
    a("s_and_b32 s84, s2, 7","s_lshl_b32 s84, s84, 5","s_lshr_b32 s2, s2, 3","s_or_b32 s2, s2, s84")
    a("v_lshrrev_b32 v2, 1, v0","s_lshl_b32 s84, s2, 2","v_lshl_add_u32 v3, v2, 10, s84")
    a("v_and_b32 v1, 63, v0","v_lshrrev_b32 v2, 6, v0",f"s_mov_b32 s38, {NCH*1024}","s_mov_b32 s39, 0x20000","v_readfirstlane_b32 s24, v2")
    a("s_waitcnt lgkmcnt(0)")
    a(f"s_add_u32 s36, s22, {WS_O}","s_addc_u32 s37, s23, 0","s_and_b32 s37, s37, 0xffff")
    a(f"buffer_load_dword v{vENT}, v3, s[36:39], 0 offen")
    a(f"s_mul_i32 s27, s2, {SM}",f"s_add_u32 s28, s27, {SM+SA}",f"s_add_u32 s27, s27, {SA}","s_lshr_b32 s27, s27, 13","s_lshr_b32 s28, s28, 13","s_sub_u32 s28, s28, s27")
    a("s_lshr_b32 s25, s24, 2","s_and_b32 s26, s24, 3","s_mov_b32 s29, 0","s_mov_b32 s31, 0")
    srd(a,32,22,23,WS_SIZE)
    srd(a,52,4,5,N*256)
    srd(a,64,18,19,256)
    a("s_lshl_b32 s86, s26, 7","s_add_u32 s48, s22, s86","s_addc_u32 s49, s23, 0","s_and_b32 s49, s49, 0xffff","s_or_b32 s49, s49, 0x100000","s_mov_b32 s50, -1","s_mov_b32 s51, 0x800000")
    a("s_mov_b32 s40, 1.0","s_mov_b32 s41, 1.0",f"s_mul_i32 s44, s24, {2*SLOT}",f"s_add_u32 s44, s44, {LRING}",f"s_add_u32 s45, s44, {SLOT}")
    a(f"v_mov_b32 v{vDEG}, 0")
    a("K2_PASS:")
    Z=U
    for i in range(4): a(f"v_mov_b32 v{Z+i}, 0")
    a(f"v_lshlrev_b32 v{T}, 4, v0",f"v_lshlrev_b32 v{T+1}, 2, v1",f"ds_write_b32 v{T+1}, v{Z} offset:{LCNT}")
    for k in range(5): a(f"ds_write_b128 v{T}, v[{Z}:{Z+3}] offset:{LREC+8192*k}")
    a(f"v_and_b32 v{T+1}, 7, v0",f"v_lshlrev_b32 v{T+1}, 7, v{T+1}",f"v_sub_u32 v{U+4}, {ZROW*512+BIAS}, v{T+1}")
    for j in range(1,4): a(f"v_subrev_u32 v{U+4+j}, {DPAD*j}, v{U+4}")
    a(f"ds_write_b128 v{T}, v[{U+4}:{U+7}] offset:{LSRC}")
    a(f"v_and_b32 v{T+1}, 127, v0",f"v_lshlrev_b32 v{T+2}, 4, v{T+1}",f"ds_write_b128 v{T+2}, v[{U+4}:{U+7}] offset:{LSRC+8192}")
    a(f"v_mov_b32 v{T+3}, {ZOFF}",f"v_lshlrev_b32 v{T+2}, 2, v0",f"ds_write_b32 v{T+2}, v{T+3} offset:{LCH}",
      f"v_lshlrev_b32 v{T+1}, 2, v{T+1}",f"ds_write_b32 v{T+1}, v{T+3} offset:{LCH+2048}")
    a(f"v_and_b32 v{T+1}, 1, v1",f"v_lshrrev_b32 v{T+4}, 1, v0",f"v_mul_u32_u24 v{T+4}, {CH}, v{T+4}",
      f"s_lshl_b32 s87, s24, 10",f"s_add_u32 s87, s87, {LARR}","s_lshl_b32 s88, s31, 2","s_sub_u32 s88, s87, s88","s_add_u32 s86, s31, 256",
      f"v_add_u32 v{T+10}, s31, v1",f"v_lshl_add_u32 v{T+14}, v1, 2, s87",f"v_sub_u32 v{T+15}, 1, v{T+1}")
    for k in range(1,4): a(f"v_add_u32 v{T+10+k}, {64*k}, v{T+10}")
    stamp(a,4)
    a("s_waitcnt vmcnt(0)")
    stamp(a,5)
    a(f"v_lshrrev_b32 v{T}, 16, v{vENT}",f"v_mul_u32_u24 v{T+2}, v{T}, v{T+15}",f"v_and_b32 v{T+5}, 0xffff, v{vENT}",f"v_add_u32 v{T+4}, v{T+4}, v{T+5}")
    dpp_scan(a,"v_add_u32",[T+2])
    a(f"v_sub_u32 v{T+3}, v{T+2}, v{T}",f"v_readlane_b32 s30, v{T+2}, 63",f"v_sub_u32 v{T+4}, v{T+4}, v{T+3}",
      f"v_max_u32 v{T+3}, s31, v{T+3}",f"v_add_u32 v{T+3}, v{T+3}, v{T+1}",f"v_min_u32 v{T+2}, s86, v{T+2}",
      f"v_lshl_add_u32 v{T+5}, v{T+3}, 2, s88",f"v_sub_u32 v{T+2}, v{T+2}, v{T+3}")
    a("K2_EXP:")
    for it in range(8): a(f"v_cmpx_lt_i32 vcc, {2*it}, v{T+2}",f"ds_write_b32 v{T+5}, v{T+4} offset:{8*it}")
    a(f"v_cmpx_lt_i32 vcc, 16, v{T+2}","s_cbranch_execz K2_EXPD",f"v_subrev_u32 v{T+2}, 16, v{T+2}",f"v_add_u32 v{T+5}, 64, v{T+5}","s_branch K2_EXP","K2_EXPD:","s_mov_b64 exec, -1")
    for k in range(4): a(f"ds_read_b32 v{T+6+k}, v{T+14} offset:{256*k}")
    a(f"v_bfrev_b32 v{T+4}, 2",f"s_mov_b32 s86, {WS_R}")
    for k in range(4): a(f"v_cmp_gt_u32 s[{72+2*k}:{73+2*k}], s30, v{T+10+k}")
    for k in range(4):
        a(f"s_waitcnt lgkmcnt({3-k})",f"v_add_u32 v{T+10+k}, v{T+10+k}, v{T+6+k}",f"v_mul_u32_u24 v{T+10+k}, 12, v{T+10+k}",f"v_cndmask_b32 v{T+10+k}, v{T+4}, v{T+10+k}, s[{72+2*k}:{73+2*k}]",
          f"buffer_load_dwordx3 v[{RK+4*k}:{RK+4*k+2}], v{T+10+k}, s[32:35], s86 offen")
    stamp(a,6)
    a("s_barrier")
    a("s_cmp_lg_u32 s29, 0","s_cbranch_scc1 K2_NOBULK")
    a("v_lshrrev_b32 v2, 4, v1","s_and_b32 s86, s24, 1","s_lshl_b32 s86, s86, 3","v_add_u32 v3, s86, v2",f"v_and_b32 v{T}, 15, v1",f"v_xor_b32 v3, v3, v{T}","v_lshlrev_b32 v3, 4, v3","v_lshl_add_u32 v3, v2, 8, v3","v_xor_b32 v2, 64, v3")
    a("s_lshl_b32 s86, s24, 11","s_lshl_b32 s87, s27, 8","s_add_u32 s87, s87, s86",f"s_add_u32 m0, s86, {LXT}","s_lshl_b32 s86, s24, 13")
    a("buffer_load_dwordx4 v3, s[52:55], s87 offen lds","buffer_load_dwordx4 v2, s[52:55], s87 offen offset:1024 lds")
    a("v_lshlrev_b32 v2, 4, v1",f"s_add_u32 s86, s86, {WS_W1}","s_add_u32 s87, s86, 4096")
    for s in range(8): a(f"buffer_load_dwordx4 v[{QB+4*s}:{QB+4*s+3}], v2, s[32:35], s{86+(s>>2)} offen offset:{1024*(s&3)}")
    a("v_and_b32 v3, 31, v1","v_lshlrev_b32 v2, 3, v3","s_lshl_b32 s86, s26, 9",f"s_add_u32 s86, s86, {WS_C}")
    for ct in range(2): a(f"buffer_load_dwordx2 v[{r.BX[ct]}:{r.BX[ct]+1}], v2, s[32:35], s86 offen offset:{256*ct}")
    a("v_lshlrev_b32 v2, 2, v3","s_lshl_b32 s86, s24, 7",f"s_add_u32 s86, s86, {WS_C+2048}",f"buffer_load_dword v{B1R}, v2, s[32:35], s86 offen")
    a("v_lshlrev_b32 v2, 1, v3","s_lshl_b32 s86, s26, 6",f"buffer_load_ushort v{vB2}, v2, s[64:67], s86 offen")
    a(f"s_mov_b32 s86, {WS_C+3072}",f"buffer_load_dwordx4 v[{WM}:{WM+3}], off, s[32:35], s86")
    a(f"v_min_u32 v2, {NPW*2-1}, v0","v_lshlrev_b32 v2, 4, v2",f"s_mov_b32 s86, {WS_PM}",f"buffer_load_dwordx4 v[{PMR}:{PMR+3}], v2, s[32:35], s86 offen")
    for i in range(4): a(f"v_mov_b32 v{Z+i}, 0")
    a(f"v_mov_b32 v{T+6}, 0x3f80")
    for rnd in range(2):
        if rnd==0: a(f"v_lshrrev_b32 v{T+1}, 2, v0")
        else: a(f"v_add_u32 v{T+1}, 128, v{T+7}",f"v_min_u32 v{T+1}, 199, v{T+1}")
        a(f"v_mov_b32 v{T+7}, v{T+1}",f"v_and_b32 v{T+2}, 3, v0",
          f"v_mul_u32_u24 v{T+3}, 1311, v{T+1}",f"v_lshrrev_b32 v{T+3}, 16, v{T+3}",f"v_mul_u32_u24 v{T+3}, 50, v{T+3}",f"v_sub_u32 v{T+3}, v{T+1}, v{T+3}",
          f"v_mul_u32_u24 v{T+1}, 192, v{T+1}",f"v_lshl_add_u32 v{T+1}, v{T+2}, 4, v{T+1}",
          f"ds_write_b128 v{T+1}, v[{Z}:{Z+3}] offset:{LQI+128}",
          f"v_subrev_u32 v{T+4}, 25, v{T+3}",f"v_min_u32 v{T+4}, v{T+4}, v{T+3}",
          f"v_lshlrev_b32 v{T+2}, 3, v{T+2}",f"v_sub_u32 v{T+4}, v{T+4}, v{T+2}",f"v_lshl_add_u32 v{T+1}, v{T+4}, 1, v{T+1}",
          f"v_cmpx_gt_u32 vcc, 8, v{T+4}",f"v_cmpx_ne_u32 vcc, 49, v{T+3}",
          f"ds_write_b16 v{T+1}, v{T+6} offset:{LQI+128}","s_mov_b64 exec, -1")
    a(f"v_bfe_u32 v{T}, v0, 3, 2",f"v_mul_u32_u24 v{T}, 9600, v{T}",f"v_and_b32 v{T+1}, 7, v0",f"v_lshl_add_u32 v{T}, v{T+1}, 4, v{T}",f"ds_write_b128 v{T}, v[{Z}:{Z+3}] offset:{LQI+ZOFF}")
    a(f"v_and_b32 v{T}, 3, v0",f"v_lshlrev_b32 v{T}, 9, v{T}",f"ds_write_b128 v{T}, v[{Z}:{Z+3}] offset:{LZ}")
    a(f"v_and_b32 v{T}, 31, v1",f"v_lshrrev_b32 v{T+1}, 5, v1",f"v_lshlrev_b32 v{T+1}, 3, v{T+1}",f"v_sub_u32 v{T}, v{T}, v{T+1}",
      f"v_and_b32 v{T+1}, 1, v1",f"v_lshlrev_b32 v{T+1}, 4, v{T+1}",f"v_lshlrev_b32 v{T+1}, v{T+1}, v{T+6}",f"v_ashrrev_i32 v{T}, 1, v{T}")
    for q in range(4):
        a(f"v_cmp_eq_u32 vcc, {q}, v{T}",f"v_cmp_eq_u32 s[84:85], {8+q}, v{T}","s_nop 0",f"v_cndmask_b32 v{r.BS[0]+q}, 0, v{T+1}, vcc",f"v_cndmask_b32 v{r.BS[1]+q}, 0, v{T+1}, s[84:85]")
    a(f"v_and_b32 v{T}, 1, v1",f"v_bfe_u32 v{T+1}, v1, 4, 1",f"v_lshl_or_b32 v{T}, v{T+1}, 1, v{T}",f"v_bfe_u32 v{T+1}, v1, 2, 1",f"v_lshl_or_b32 v{T}, v{T+1}, 2, v{T}",
      f"v_bfe_u32 v{T+2}, v1, 1, 1",f"v_bfe_u32 v{T+3}, v1, 3, 1",f"v_lshl_or_b32 v{T+2}, v{T+3}, 1, v{T+2}",
      f"v_mul_u32_u24 v{T+3}, {DPAD}, v{T+2}",f"v_lshl_add_u32 v{T+3}, v{T}, 7, v{T+3}",f"v_lshrrev_b32 v{T+4}, 5, v1",f"v_lshl_add_u32 v{T+3}, v{T+4}, 4, v{T+3}",f"v_add_u32 v{r.aA}, s44, v{T+3}",
      f"v_lshl_add_u32 v2, v{T}, 2, v{T+2}","v_lshlrev_b32 v2, 4, v2",
      f"v_cmp_eq_u32 s[42:43], v{T+1}, v{T+4}",f"v_mov_b32 v{T+5}, 1024","s_mul_i32 s86, s26, 9600",f"v_cndmask_b32 v{r.stREC}, 0, v{T+5}, s[42:43]")
    a(f"v_bfe_u32 v{T}, v1, 4, 1",f"v_and_b32 v{T+1}, 3, v1",f"v_lshlrev_b32 v{T+1}, 3, v{T+1}",f"v_lshl_add_u32 v{T}, v{T}, 5, v{T+1}",f"s_add_u32 s86, s86, {LQI}",f"v_add_u32 v{r.cQ}, s86, v{T}")
    for i in range(16): a(f"v_pk_mov_b32 v[{r.S[0]+2*i}:{r.S[0]+2*i+1}], v[{Z}:{Z+1}], v[{Z}:{Z+1}]")
    stamp(a,7)
    a("s_waitcnt vmcnt(16)","s_branch K2_HIST","K2_NOBULK:",f"s_mov_b32 s86, {WS_C+3072}",f"buffer_load_dwordx4 v[{WM}:{WM+3}], off, s[32:35], s86","s_waitcnt vmcnt(0)","K2_HIST:")
    stamp(a,8)
    LD=T; RN=T+4; AD=T+8; SV=T+12
    a(f"v_mov_b32 v{U}, 1")
    for k in range(4): a(f"v_bfe_u32 v{LD+k}, v{RK+4*k+2}, 16, 6",f"v_lshlrev_b32 v{AD+k}, 2, v{LD+k}")
    for k in range(4): a(f"s_mov_b64 exec, s[{72+2*k}:{73+2*k}]",f"ds_add_rtn_u32 v{RN+k}, v{AD+k}, v{U} offset:{LCNT}")
    a("s_mov_b64 exec, -1",f"v_mov_b32 v{U+1}, {BIAS}")
    for k in range(4): a(f"v_and_b32 v{SV+k}, 0x3fff, v{RK+4*k+2}",f"v_lshl_add_u32 v{SV+k}, v{SV+k}, 9, v{U+1}",f"v_mul_u32_u24 v{LD+k}, 192, v{LD+k}")
    a(f"v_lshlrev_b32 v{U}, 2, v1")
    a(f"v_and_b32 v{U+1}, 31, v1",f"v_lshrrev_b32 v{U+2}, 5, v1",f"v_and_b32 v{U+3}, 15, v1",f"v_xor_b32 v{U+3}, v{U+2}, v{U+3}",f"v_lshlrev_b32 v{U+3}, 4, v{U+3}",f"v_lshl_add_u32 v{U+8}, v{U+1}, 8, v{U+3}")
    for s in range(1,8): a(f"v_xor_b32 v{U+8+s}, {32*s}, v{U+8}")
    for s in range(8): a(f"v_add_u32 v{U+8+s}, {LXT}, v{U+8+s}")
    a("s_waitcnt vmcnt(14) lgkmcnt(0)","s_barrier")
    stamp(a,9)
    a(f"ds_read_b32 v{U+1}, v{U} offset:{LCNT}")
    a("s_cmp_lg_u32 s29, 0","s_cbranch_scc1 K2_NOQA")
    for nb in range(2):
        for s in range(8):
            if nb==1 and s==6: break
            a(f"ds_read_b128 v[{QA+32*nb+4*s}:{QA+32*nb+4*s+3}], v{U+8+s} offset:{8192*nb}")
    a("s_waitcnt lgkmcnt(14)")
    for s in (6,7): a(f"ds_read_b128 v[{QA+32+4*s}:{QA+32+4*s+3}], v{U+8+s} offset:8192")
    a("s_branch K2_QA","K2_NOQA:","s_waitcnt lgkmcnt(0)","K2_QA:")
    a(f"v_add_u32 v{vDEG}, v{vDEG}, v{U+1}",f"v_add_u32 v{U+1}, 3, v{U+1}",f"v_lshrrev_b32 v{U+1}, 2, v{U+1}",f"v_mov_b32 v{U+2}, v{U+1}")
    dpp_scan(a,"v_add_u32",[U+2])
    a("v_cmp_lt_u32 vcc, 24, v1",f"v_readlane_b32 s86, v{U+2}, 24",f"v_readlane_b32 s87, v{U+2}, 63",f"v_sub_u32 v{U+2}, v{U+2}, v{U+1}")
    a("s_sub_u32 s87, s87, s86","s_add_u32 s87, s87, 7","s_lshr_b32 s87, s87, 3",
      "s_add_u32 s88, s86, 7","s_lshr_b32 s88, s88, 3",
      "s_add_u32 s89, s88, 3","s_lshl_b32 s90, s89, 3","s_sub_u32 s90, s90, s86")
    a(f"v_mov_b32 v{U+1}, s90",f"v_cndmask_b32 v{U+1}, 0, v{U+1}, vcc",f"v_add_lshl_u32 v{U+2}, v{U+2}, v{U+1}, 2")
    for k in range(4): a(f"ds_bpermute_b32 v{AD+k}, v{AD+k}, v{U+2}")
    a("s_cmp_eq_u32 s25, 0","s_cselect_b32 s46, s88, s87","s_cselect_b32 s91, 0, s89")
    a(f"v_mov_b32 v{U+4}, 0x3f80",f"v_mov_b32 v{U+5}, 0",f"s_movk_i32 s92, {-DPAD}","s_movk_i32 s93, -128")
    a(f"s_lshl_b32 s94, s91, 9",f"s_add_u32 s94, s94, {LREC}",f"v_add_u32 v{U}, s94, v2",f"v_mov_b32 v{U+1}, {LZ}",f"v_cndmask_b32 v{r.aREC}, v{U+1}, v{U}, s[42:43]")
    a(f"s_lshl_b32 s94, s91, 7",f"s_add_u32 s94, s94, {LSRC}",f"v_lshrrev_b32 v{U}, 3, v1",f"v_lshl_add_u32 v{r.aSRC}, v{U}, 4, s94")
    a(f"s_lshl_b32 s94, s91, 5",f"s_add_u32 s94, s94, {LCH}",f"v_bfe_u32 v{U}, v1, 2, 2",f"v_lshrrev_b32 v{U+1}, 5, v1",f"v_lshl_add_u32 v{U}, v{U+1}, 2, v{U}",f"v_lshl_add_u32 v{r.aCH}, v{U}, 2, s94")
    a("s_waitcnt vmcnt(6) lgkmcnt(0)")
    QM=[f"{MF} v[{r.Y[nb]}:{r.Y[nb]+15}], v[{QA+32*nb+4*s}:{QA+32*nb+4*s+3}], v[{QB+4*s}:{QB+4*s+3}], "+("0" if s==0 else f"v[{r.Y[nb]}:{r.Y[nb]+15}]") for s in range(8) for nb in range(2)]
    for k in range(4):
        sl=AD+k
        a(QM[2*k],f"v_add_u32 v{sl}, v{sl}, v{RN+k}",
          f"v_bfe_u32 v{U+6}, v{sl}, 2, 3",f"v_and_b32 v{U+7}, 3, v{sl}",f"v_mad_i32_i24 v{SV+k}, v{U+6}, s93, v{SV+k}",f"v_mad_i32_i24 v{SV+k}, v{U+7}, s92, v{SV+k}",
          f"v_cmp_eq_u32 vcc, 0, v{U+7}",QM[2*k+1],
          f"v_lshlrev_b32 v{U+7}, 2, v{sl}",f"v_and_b32 v{U+6}, 48, v{U+7}",f"v_lshlrev_b64 v[{RK+4*k+2}:{RK+4*k+3}], v{U+6}, v[{U+4}:{U+5}]",f"v_lshlrev_b32 v{U+6}, 4, v{sl}",
          f"s_mov_b64 exec, s[{72+2*k}:{73+2*k}]",
          f"ds_write_b128 v{U+6}, v[{RK+4*k}:{RK+4*k+3}] offset:{LREC}",f"ds_write_b32 v{U+7}, v{SV+k} offset:{LSRC}",
          "s_and_b64 exec, exec, vcc",f"ds_write_b32 v{sl}, v{LD+k} offset:{LCH}","s_mov_b64 exec, -1")
    a("s_cmp_ge_u32 s24, 2","s_cbranch_scc1 K2_NOPS")
    a("s_cmp_eq_u32 s24, 0","s_cselect_b32 s94, s88, s87","s_cselect_b32 s95, 0, s89","s_add_u32 s94, s94, 1",
      f"v_lshrrev_b32 v{U}, 5, v1",f"v_add_u32 v{U}, s94, v{U}",f"v_and_b32 v{U}, 1, v{U}",
      f"v_and_b32 v{U+1}, 3, v1",f"v_bfe_u32 v{U+2}, v1, 2, 3",
      f"v_lshl_add_u32 v{U}, v{U}, 2, v{U+1}",f"v_lshl_add_u32 v{U}, v{U}, 3, v{U+2}",f"v_lshlrev_b32 v{U}, 9, v{U}",
      f"v_mad_i32_i24 v{U}, v{U+1}, s92, v{U}",f"v_mad_i32_i24 v{U}, v{U+2}, s93, v{U}",
      "s_add_u32 s94, s94, s95","s_lshl_b32 s94, s94, 7","s_lshl_b32 s95, s24, 15",f"s_add_u32 s95, s95, {W2ROW*512+BIAS}",f"v_add_u32 v{U}, s95, v{U}",
      f"v_lshl_add_u32 v{U+1}, v1, 2, s94",f"ds_write_b32 v{U+1}, v{U} offset:{LSRC}")
    a("K2_NOPS:")
    a("s_waitcnt lgkmcnt(0)","s_barrier")
    stamp(a,10)
    a(f"ds_read_b128 {v(r.DI,4)}, {v(r.aSRC)}",f"ds_read_b128 v[{U+8}:{U+11}], {v(r.aSRC)} offset:128",f"ds_read_b32 {v(r.chv)}, {v(r.aCH)}","s_mov_b32 m0, s44","s_waitcnt lgkmcnt(2)")
    for j in range(4): a(f"buffer_load_dwordx4 {v(r.DI+j)}, s[48:51], 0 offen offset:{DPAD*j} lds")
    EM=U+12
    a(f"v_mov_b32 v{EM}, 0","s_waitcnt vmcnt(4)")
    for k in range(4):
        a(QM[8+2*k],f"v_lshlrev_b32 v{U}, 16, v{RK+4*k}",f"v_and_b32 v{U+1}, 0xffff0000, v{RK+4*k}",f"v_lshlrev_b32 v{U+2}, 16, v{RK+4*k+1}",f"v_and_b32 v{U+3}, 0xffff0000, v{RK+4*k+1}",QM[9+2*k],
          f"v_mul_f32_e64 v{U}, |v{U}|, s80" .replace("s80",f"v{WMP}"),f"v_fma_f32 v{U}, |v{U+1}|, v{WMP+1}, v{U}",f"v_fma_f32 v{U}, |v{U+2}|, v{WMP+2}, v{U}",f"v_fma_f32 v{U}, |v{U+3}|, v{WMP+3}, v{U}",
          f"v_max_u32 v{EM}, v{EM}, v{U}")
    a("s_mov_b32 m0, s45","s_waitcnt lgkmcnt(0)")
    a("s_cmp_lg_u32 s29, 0","s_cbranch_scc1 K2_NOQW")
    a(f"s_mov_b32 s86, {f32(-LOG2E)}",f"s_lshr_b32 s88, s24, 1","s_mul_i32 s88, s88, 9600","s_and_b32 s89, s24, 1","s_lshl_b32 s89, s89, 1","s_add_u32 s88, s88, s89",f"s_add_u32 s88, s88, {LQI}",
      f"v_lshrrev_b32 v{U}, 5, v1",f"v_and_b32 v{U+1}, 31, v1",f"v_mul_u32_u24 v{U}, 768, v{U}",f"v_lshl_add_u32 v{U}, v{U+1}, 2, v{U}",f"v_add_u32 v{U}, s88, v{U}")
    a(f"v_max3_u32 v{U+13}, v{PMR}, v{PMR+1}, v{PMR+2}",f"v_max_u32 v{U+13}, v{U+13}, v{PMR+3}",f"v_mov_b32 v{U+14}, 0",f"v_lshlrev_b32 v{vB2}, 16, v{vB2}")
    for nb in range(2):
        Y=r.Y[nb]
        nreg=16 if nb==0 else 10
        for m in range(nreg//2):
            a(f"v_fma_f32 v{Y+2*m}, v{Y+2*m}, s86, v{B1R}",f"v_fma_f32 v{Y+2*m+1}, v{Y+2*m+1}, s86, v{B1R}")
            a(f"v_cvt_pk_bf16_f32 v{U+1+(m&1)}, v{Y+2*m}, v{Y+2*m+1}",f"v_max3_f32 v{U+14}, |v{Y+2*m}|, |v{Y+2*m+1}|, v{U+14}")
            i,j=(2*m)>>2,(2*m)&3
            off=(32*nb+8*i+j)*192
            if nb==1 and m==4:
                a("s_mov_b32 exec_hi, 0",f"ds_write_b16 v{U}, v{U+1+(m&1)} offset:{off}","s_mov_b32 exec_hi, -1")
            else:
                a(f"ds_write_b16 v{U}, v{U+1+(m&1)} offset:{off}",f"ds_write_b16_d16_hi v{U}, v{U+1+(m&1)} offset:{off+192}")
    a("s_branch K2_QW","K2_NOQW:",f"v_mov_b32 v{U+13}, 0",f"v_mov_b32 v{U+14}, 0","K2_QW:")
    dpp_scan(a,"v_max_u32",[EM,U+13,U+14])
    for j in range(4): a(f"buffer_load_dwordx4 v{U+8+j}, s[48:51], 0 offen offset:{DPAD*j} lds")
    a("s_add_u32 s88, s30, 255","s_lshr_b32 s88, s88, 8",f"v_mov_b32 v{U+2}, s88",f"v_mov_b32 v{U+3}, {LB}")
    a("s_mov_b32 exec_lo, 0","s_brev_b32 exec_hi, 1",f"ds_max_u32 v{U+3}, v{U+13}",f"ds_max_u32 v{U+3}, v{U+14} offset:4",f"ds_max_u32 v{U+3}, v{EM} offset:8",f"ds_max_u32 v{U+3}, v{U+2} offset:12","s_mov_b64 exec, -1")
    for i in range(4): a(f"v_mov_b32 v{r.OH+i}, 0",f"v_mov_b32 v{r.H[0]+i}, 0",f"v_mov_b32 v{r.H[1]+i}, 0")
    a(f"v_add_u32 {v(r.aQ[0])}, {v(r.chv)}, {v(r.cQ)}")
    a("s_waitcnt lgkmcnt(0)","s_barrier")
    stamp(a,11)
    a(f"ds_read_b128 v[{T}:{T+3}], v{U+3}",
      f"ds_read_b128 {v(r.AX,4)}, {v(r.aREC)}",f"ds_read_b64_tr_b16 {v(r.BX[0]+2,2)}, {v(r.aQ[0])}",f"ds_read_b64_tr_b16 {v(r.BX[1]+2,2)}, {v(r.aQ[0])} offset:64",
      f"ds_read_b128 {v(r.DI,4)}, {v(r.aSRC)} offset:256",f"ds_read_b32 {v(r.chv)}, {v(r.aCH)} offset:32","s_waitcnt vmcnt(4)")
    for q in range(4): a(f"ds_read_b128 {v(r.AF[q],4)}, {v(r.aA)} offset:{32*q}")
    a("s_mov_b32 m0, s44","s_waitcnt lgkmcnt(9)",f"v_add_f32 v{T}, v{T}, v{T+1}",f"v_add_f32 v{T}, v{T}, v{T+2}",f"v_readfirstlane_b32 s47, v{T+3}",f"v_readfirstlane_b32 s92, v{T}","s_waitcnt lgkmcnt(0)")
    a(f"{MF} {v(r.Y[0],16)}, {v(r.AF[0],4)}, {v(r.BS[0],4)}, 0",f"{MF} {v(r.Y[0],16)}, {v(r.AF[1],4)}, {v(r.BS[1],4)}, {v(r.Y[0],16)}",f"{MF} {v(r.Y[0],16)}, {v(r.AX,4)}, {v(r.BX[0],4)}, {v(r.Y[0],16)}")
    for j in range(4): a(f"buffer_load_dwordx4 {v(r.DI+j)}, s[48:51], 0 offen offset:{DPAD*j} lds")
    stamp(a,12)
    if STAMP and FINE: a("s_memtime s[100:101]","s_waitcnt lgkmcnt(0)","s_mov_b32 s4, s100","s_mov_b32 s6, s46")
    a("s_cmp_eq_u32 s46, 0","s_cbranch_scc1 K2_DONE")
    a("s_nop 4",f"s_cmp_le_u32 s92, {f32(THR)}","s_cbranch_scc0 K2_LOOP_S")
    for nm,fast in (("F",True),("S",False)):
        if nm=="F": a(".p2align 6")
        a(f"K2_LOOP_{nm}:")
        a(tile(r,0,fast))
        a("s_sub_u32 s46, s46, 1","s_cmp_eq_u32 s46, 0","s_cbranch_scc1 K2_EXITA")
        a(tile(r,1,fast))
        a("s_sub_u32 s46, s46, 1","s_cmp_lg_u32 s46, 0",f"s_cbranch_scc1 K2_LOOP_{nm}")
        a("s_branch K2_EXITB")
    a("K2_EXITA:",f"v_mov_b32 v{r.OH+2}, 0",f"v_mov_b32 v{r.OH+3}, 0","s_nop 1",f"{MF} {v(r.S[0],16)}, {v(r.H[0],4)}, {v(r.OH,4)}, {v(r.S[0],16)}")
    a("K2_EXITB:","s_nop 1",f"{MF} {v(r.S[1],16)}, {v(r.H[1],4)}, {v(r.OH,4)}, {v(r.S[1],16)}")
    a("K2_DONE:","s_setprio 0","s_add_u32 s29, s29, 1","s_add_u32 s31, s31, 256","s_cmp_lt_u32 s29, s47","s_waitcnt vmcnt(0) lgkmcnt(0)","s_cbranch_scc0 K2_EPI")
    a("s_nop 7","s_barrier","s_branch K2_PASS")
    a("K2_EPI:")
    stamp(a,13)
    if STAMP and FINE: a("s_memtime s[100:101]","s_waitcnt lgkmcnt(0)","s_sub_u32 s5, s100, s4")
    a("v_and_b32 v3, 31, v1","v_lshlrev_b32 v2, 1, v3")
    a(f"s_mov_b32 s86, {f32(-math.log(2))}",f"s_mov_b32 s87, {f32(-math.log(2))}")
    a(f"v_cvt_f32_u32 v{T}, v{vDEG}",f"v_cmp_lt_u32 vcc, 24, v1",f"v_mov_b32 v{T+1}, 7",f"v_lshrrev_b32 v{T+3}, 5, v1",f"v_cndmask_b32 v{T+1}, 0, v{T+1}, vcc",f"v_add_u32 v{T+1}, v{T+1}, v1",f"v_min_u32 v{T+1}, 63, v{T+1}",f"v_lshlrev_b32 v{T+1}, 2, v{T+1}",f"ds_write_b32 v{T+1}, v{T} offset:{LDEG}")
    a(f"s_lshl_b32 s88, s25, 5",f"v_add_u32 v{T+4}, s88, v3",f"v_mul_u32_u24 v{T+4}, 528, v{T+4}",
      f"s_lshl_b32 s88, s26, 7",f"v_lshl_add_u32 v{T+5}, v{T+3}, 5, s88",f"v_add_u32 v{T+5}, v{T+5}, v{T+4}",
      f"v_lshl_add_u32 v{T+4}, v{T+3}, 4, v{T+4}")
    for i in range(16): a(f"v_pk_mul_f32 v[{r.S[0]+2*i}:{r.S[0]+2*i+1}], v[{r.S[0]+2*i}:{r.S[0]+2*i+1}], s[86:87]")
    for i in range(16): a(f"v_cvt_pk_bf16_f32 v{r.Y[0]+i}, v{r.S[0]+2*i}, v{r.S[0]+2*i+1}")
    a(f"s_mul_i32 s88, s26, {4*SLOT}",f"s_add_u32 s88, s88, {LRING}",f"v_lshl_add_u32 v{T+6}, v1, 4, s88")
    a(f"s_lshl_b32 s88, s25, 7",f"v_lshl_add_u32 v{T+7}, v{T+3}, 4, s88")
    a("s_mul_i32 s88, s25, 25","s_add_u32 s88, s88, s27","s_lshl_b32 s88, s88, 8","s_add_u32 s68, s20, s88","s_addc_u32 s69, s21, 0","s_and_b32 s69, s69, 0xffff",
      "s_sub_u32 s88, s28, 25","s_cmp_eq_u32 s25, 0","s_cselect_b32 s88, 25, s88","s_lshl_b32 s70, s88, 8","s_mov_b32 s71, 0x20000","s_movk_i32 s89, 0x1000")
    a(f"s_lshl_b32 s88, s26, 6",f"v_lshl_add_u32 v{T+8}, v{T+3}, 10, s88",f"v_add_u32 v{T+8}, v{T+8}, v2")
    a("s_waitcnt lgkmcnt(0)","s_barrier")
    for q in range(4): a(f"ds_write_b128 v{T+5}, v[{r.Y[0]+4*q}:{r.Y[0]+4*q+3}] offset:{LREC+64*(q>>1)+16*(q&1)}")
    for i in range(4): a(f"ds_read_b128 v[{r.Y[1]+4*i}:{r.Y[1]+4*i+3}], v{T+7} offset:{LDEG+32*i}")
    for s in range(7): a(f"ds_read_b128 v[{QB+4*s}:{QB+4*s+3}], v{T+6} offset:{(s>>3)*2*SLOT+((s>>2)&1)*SLOT+(s&3)*DPAD}")
    a("s_waitcnt lgkmcnt(11)","s_barrier")
    stamp(a,14)
    fr=[r.S[0]+4*i for i in range(8)]+[r.AF[i] for i in range(4)]+[r.N[0]+4*i for i in range(4)]
    for s in range(4): a(f"ds_read_b128 v[{fr[s]}:{fr[s]+3}], v{T+4} offset:{LREC+32*s}")
    a("s_waitcnt lgkmcnt(11)")
    for i in range(16): a(f"v_mul_f32 v{r.Y[1]+i}, v{r.Y[1]+i}, v{vB2}")
    a("s_nop 0")
    for s in range(16):
        n_after=0
        pend=[]
        if s+4<16: pend.append(f"ds_read_b128 v[{fr[s+4]}:{fr[s+4]+3}], v{T+4} offset:{LREC+32*(s+4)}")
        if s+7<16: q=s+7; pend.append(f"ds_read_b128 v[{QB+4*q}:{QB+4*q+3}], v{T+6} offset:{(q>>3)*2*SLOT+((q>>2)&1)*SLOT+(q&3)*DPAD}")
        EP.append(pend)
    issued=[('B',q) for q in range(7)]+[('A',q) for q in range(4)]
    for s in range(16):
        need_=max(issued.index(('A',s)),issued.index(('B',s)))
        a(f"s_waitcnt lgkmcnt({len(issued)-1-need_})",f"{MF} {v(r.Y[1],16)}, v[{fr[s]}:{fr[s]+3}], v[{QB+4*s}:{QB+4*s+3}], {v(r.Y[1],16)}")
        for x in EP[s]: a(x)
        if s+4<16: issued.append(('A',s+4))
        if s+7<16: issued.append(('B',s+7))
    a("s_nop 11")
    for m in range(8):
        i,j=(2*m)>>2,(2*m)&3
        a(f"v_cvt_pk_bf16_f32 v{r.Y[0]+m}, v{r.Y[1]+2*m}, v{r.Y[1]+2*m+1}")
        so="0" if i<2 else "s89"; off=((8*i+j)*256)&4095
        a(f"buffer_store_short v{r.Y[0]+m}, v{T+8}, s[68:71], {so} offen offset:{off}",f"buffer_store_short_d16_hi v{r.Y[0]+m}, v{T+8}, s[68:71], {so} offen offset:{off+256}")
    stamp(a,15)
    stamp_flush(a,22,1,24,list(range(3,17)))
    a("K2_END:","s_endpgm")
    return a.text(), 256, (102 if STAMP else 96)
HEADER=open('standalone__edge_featured_mpnn_mpnn__graph.s.ref').read().split('; Override')[0]
def build(fn):
    t1,v1,s1=gen_k1(); t2,v2,s2=gen_k2()
    for nm,t in (('k1',t1),('k2',t2)):
        h=hazard.check(t); print(nm, "\n".join(h) or "no hazards")
    out=HEADER+f"; @launch kernel=mpnn_k1_kernel grid=({K1_GRID},1,1) block=(512,1,1) lds={K1_LDS}\n; @launch kernel=mpnn_k2_kernel grid=(256,1,1) block=(512,1,1) lds={K2_LDS}\n"
    out+='.amdgcn_target "amdgcn-amd-amdhsa--gfx950"\n.text\n'
    for nm,t in (('mpnn_k1_kernel',t1),('mpnn_k2_kernel',t2)):
        out+=f".globl {nm}\n.p2align 8\n.type {nm},@function\n"+t
    out+=kd('mpnn_k1_kernel',v1,s1)+kd('mpnn_k2_kernel',v2,s2)
    open(fn,'w').write(out)
    print("LDS k2",K2_LDS)
if __name__=='__main__':
    if len(sys.argv)>2 and 'stamp' in sys.argv[2]: STAMP=True
    for o in sys.argv[3:]:
        k,val=o.split('=',1); globals()[k]=eval(val)
    build(sys.argv[1] if len(sys.argv)>1 else 'standalone__edge_featured_mpnn_mpnn__graph.s')
```
